```python
import torch

def _softmax(x, axis=-1):
    return torch.softmax(x, dim=axis)
def _gelu(x):
    return torch.nn.functional.gelu(x, approximate="tanh")
def _silu(x):
    return torch.nn.functional.silu(x)
def _sigmoid(x):
    return torch.sigmoid(x)
def _layernorm(x, axis=-1, eps=1e-5):
    m = x.mean(dim=axis, keepdim=True)
    v = x.var(dim=axis, keepdim=True, unbiased=False)
    return (x - m) / torch.sqrt(v + eps)
def _scatter_add(tgt, idx, src, axis=0):
    return tgt.clone().index_add_(axis, idx, src)
def _segment_sum(src, seg, n):
    out = torch.zeros((n,) + src.shape[1:], dtype=src.dtype)
    return out.index_add_(0, seg, src)
def _pad(x, pw):
    flat = tuple(v for pair in reversed(pw) for v in pair)
    return torch.nn.functional.pad(x, flat)

kernel_name = 'standalone__gqa_block_cached__near_ridge'

def setup_inputs():

    _w = (lambda a: (lambda t: t.to(torch.bfloat16) if t.is_floating_point() else t)(torch.as_tensor(a)))
    B, Sq, D = 16, 96, 576
    Hq, Hkv, Sk, Dh = 32, 16, 512, 128
    assert Hq % Hkv == 0, (Hq, Hkv)
    return {
        "x": _w((lambda *s: torch.randn(*s, dtype=torch.bfloat16) * 0.8)(B, Sq, D)),
        "k_cache": _w((lambda *s: torch.randn(*s, dtype=torch.bfloat16) * 0.8)(B, Hkv, Sk, Dh)),
        "v_cache": _w((lambda *s: torch.randn(*s, dtype=torch.bfloat16) * 0.05)(B, Hkv, Sk, Dh)),
        "wq": _w((lambda *s: torch.randn(*s, dtype=torch.bfloat16) * 0.8)(D, Hq * Dh) * (D ** -0.5)),
        "wo": _w((lambda *s: torch.randn(*s, dtype=torch.bfloat16) * 0.05)(Hq * Dh, D) * ((Hq * Dh) ** -0.5)),
    }

def reference(x, k_cache, v_cache, wq, wo):
    B, Sq, D = x.shape
    Hq, Dh = 32, 128
    Hkv = k_cache.shape[1]
    rep = Hq // Hkv
    q = (lambda x, *d: x.permute(*d))((x @ wq).reshape(B, Sq, Hq, Dh), 0, 2, 1, 3)
    k = (lambda x, n, axis: torch.repeat_interleave(x, n, dim=axis))(k_cache, rep, axis=1)
    v = (lambda x, n, axis: torch.repeat_interleave(x, n, dim=axis))(v_cache, rep, axis=1)
    scores = torch.einsum("bhqd,bhkd->bhqk", q, k) * (Dh ** -0.5)
    p = _softmax(scores, axis=-1)
    o = torch.einsum("bhqk,bhkd->bhqd", p, v)
    return (lambda x, *d: x.permute(*d))(o, 0, 2, 1, 3).reshape(B, Sq, Hq * Dh) @ wo
```

```python
import re
def regs(tok):
    tok = tok.strip()
    tok = re.sub(r"^-|^abs\(|\)$|^\|", "", tok).strip("|")
    m = re.fullmatch(r"([vsa])(\d+)", tok)
    if m: return {(m.group(1), int(m.group(2)))}
    m = re.fullmatch(r"([vsa])\[(\d+):(\d+)\]", tok)
    if m: return {(m.group(1), i) for i in range(int(m.group(2)), int(m.group(3)) + 1)}
    if tok in ("vcc",): return {("s", "vcc")}
    if tok in ("m0",): return {("s", "m0")}
    if tok in ("exec",): return {("s", "exec")}
    return set()
TRANS = ("v_exp_", "v_log_", "v_rcp_", "v_rsq_", "v_sqrt_", "v_sin_", "v_cos_")
class I:
    def __init__(self, text):
        self.text = text
        t = text.split(";")[0].strip()
        p = t.split(None, 1)
        self.op = p[0]
        rest = p[1] if len(p) > 1 else ""
        ops = [o.strip() for o in rest.split(",")] if rest else []
        self.flags = ""
        if ops:
            last = ops[-1].split()
            if len(last) > 1:
                ops[-1] = last[0]; self.flags = " ".join(last[1:])
        self.ops = ops
        op = self.op
        self.rd = set(); self.wr = set(); self.kind = "other"; self.states = 1
        self.A = self.B = self.C = set()
        R = [regs(o) for o in ops]
        if op.startswith("v_mfma"):
            self.kind = "mfma"; self.wr = R[0]; self.A, self.B, self.C = R[1], R[2], R[3]; self.rd = R[1] | R[2] | R[3]
            self.passes = 8 if "32x32" in op else 4
        elif op.startswith("v_"):
            self.kind = "valu"
            if op.startswith("v_permlane") and "swap" in op:
                self.wr = R[0] | R[1]; self.rd = R[0] | R[1]
            elif op.startswith(("v_add_co", "v_sub_co", "v_addc_co")):
                self.wr = R[0] | R[1]; self.rd = set().union(*R[2:])
            else:
                self.wr = R[0]; self.rd = set().union(*R[1:]) if len(R) > 1 else set()
                if op.startswith(("v_fmac", "v_writelane")): self.rd |= R[0]
                if op.startswith("v_cndmask") and len(R) == 3: self.rd |= {("s", "vcc")}
            self.trans = op.startswith(TRANS)
        elif op.startswith("ds_read") or op.startswith("ds_bpermute") or op.startswith("ds_swizzle"):
            self.kind = "dsr"; self.wr = R[0]; self.rd = set().union(*R[1:])
        elif op.startswith("ds_"):
            self.kind = "dsw"; self.rd = set().union(*R)
        elif op.startswith("buffer_load") or op.startswith("global_load"):
            if " lds" in " " + self.flags:
                self.kind = "dma"; self.rd = set().union(*R) | {("s", "m0")}
            else:
                self.kind = "vld"; self.wr = R[0]; self.rd = set().union(*R[1:])
        elif op.startswith("buffer_store") or op.startswith("buffer_atomic") or op.startswith("global_store") or op.startswith("global_atomic"):
            self.kind = "vst"; self.rd = set().union(*R); self.data = R[0]
            if "atomic" in op and "sc0" in self.flags: self.wr = R[0]
            self.wide = "x4" in op or "x3" in op
        elif op == "s_nop":
            self.kind = "nop"; self.states = int(ops[0]) + 1
        elif op == "s_waitcnt":
            self.kind = "wait"
        elif op.startswith(("s_load", "s_memtime", "s_memrealtime")):
            self.kind = "smem"; self.wr = R[0]; self.rd = set().union(*R[1:]) if len(R) > 1 else set()
        elif op.startswith(("s_cmp", "s_cbranch", "s_branch", "s_barrier", "s_endpgm", "s_setprio", "s_sleep", "s_bitcmp")):
            self.kind = "salu0"; self.rd = set().union(*R) if R else set()
        elif op.startswith("s_"):
            self.kind = "salu"; self.wr = R[0]; self.rd = set().union(*R[1:]) if len(R) > 1 else set()
        else:
            raise ValueError("unknown op " + text)
def only(s, c): return {r for r in s if r[0] == c}
def check(trace, name="", maxerr=20):
    ins = [I(t) for t in trace if t.strip() and not t.strip().endswith(":") and not t.strip().startswith((";", "."))]
    errs = []
    lg = []; vm = []
    nbar = 0
    for n, c in enumerate(ins):
        if c.op == "s_barrier": nbar += 1
        dist = 0
        for k in range(n - 1, max(-1, n - 24), -1):
            p = ins[k]
            need = 0; why = ""
            vmem = c.kind in ("vld", "vst", "dma")
            if p.kind == "valu":
                pw = only(p.wr, "v"); ps = only(p.wr, "s")
                if c.kind == "mfma" and pw & c.rd: need, why = 2, "valu->mfma"
                if c.kind == "valu":
                    if p.trans and not c.trans and pw & c.rd: need, why = max(need, 1), "trans->valu"
                    if c.op.startswith("v_permlane") and pw & c.rd: need, why = 2, "valu->permlane"
                    if c.op.startswith(("v_readfirstlane", "v_readlane")) and pw & c.rd: need, why = max(need, 1), "valu->readlane"
                    if ps & c.rd: need, why = max(need, 2), "valu sgpr->valu"
                    if "dpp" in c.text and pw & c.rd: need, why = 2, "valu->dpp"
                if vmem and ps & c.rd: need, why = 5, "valu sgpr->vmem"
            if p.kind == "mfma":
                big = 8 if p.passes == 4 else 12
                if c.kind == "mfma":
                    if p.wr & (c.A | c.B): need, why = big, "mfma D->mfma AB"
                    elif p.wr & c.C and p.wr != c.C: need, why = big - 2, "mfma D->mfma C overlap"
                elif c.kind in ("valu", "dsr", "dsw", "vld", "vst", "dma"):
                    if p.wr & (c.rd | c.wr): need, why = big, "mfma D->use"
                if c.kind == "valu" and p.C & c.wr: need, why = max(need, 3 if p.passes == 4 else 7), why or "mfma C WAR"
            if p.kind == "salu" and ("s", "m0") in p.wr and c.kind == "dma": need, why = 1, "m0->dma"
            if p.kind == "vst" and p.wide and p.data & c.wr and c.kind in ("valu", "mfma"): need, why = 2, "store data WAR"
            if need > dist:
                errs.append(f"[{name}] #{n} hazard {why}: need {need} have {dist}: '{p.text}' -> '{c.text}'")
            dist += p.states
        if c.kind == "wait":
            m = re.search(r"lgkmcnt\((\d+)\)", c.text)
            if m:
                N = int(m.group(1)); assert N <= 15
                if any(e[1] == "smem" for e in lg) and N > 0:
                    ld = [e for e in lg if e[1] != "smem"]; sm = [e for e in lg if e[1] == "smem"]
                    ld = ld[len(ld) - N:] if N < len(ld) else ld
                    lg = sm + ld
                else:
                    lg = lg[len(lg) - N:] if 0 < N < len(lg) else ([] if N == 0 else lg)
            m = re.search(r"vmcnt\((\d+)\)", c.text)
            if m:
                N = int(m.group(1)); assert N <= 63
                vm = vm[len(vm) - N:] if 0 < N < len(vm) else ([] if N == 0 else vm)
        else:
            touch = c.rd | c.wr
            for q, nm in ((lg, "lgkm"), (vm, "vm")):
                for e in q:
                    if e[0] & touch and not (c.kind == e[1] and not (e[0] & c.rd)):
                        errs.append(f"[{name}] #{n} pending {nm} result used: '{e[2]}' -> '{c.text}'")
            if c.kind in ("dsr", "dsw", "smem"): lg.append((c.wr, c.kind, c.text))
            if c.kind in ("vld", "vst", "dma"):
                vm.append((c.wr, c.kind, c.text))
                if len(vm) > 63: errs.append(f"[{name}] #{n} vmcnt may overflow ({len(vm)}): {c.text}")
    for e in errs[:maxerr]: print(e)
    print(f"[{name}] {len(ins)} instrs, {nbar} barriers, {len(errs)} errors")
    return len(errs), nbar
```

```python
import sys, struct, math
sys.path.insert(0, "work")
import chk

KMAIN = "standalone__gqa_block_cached__near_ridge_kernel"
KRED = "gqa_reduce_kernel"
OPT = dict(stamps=0, dbg="", rot=1, check=1)

def f2u(x): return struct.unpack("<I", struct.pack("<f", x))[0]
def v(a, n=1): return f"v{a}" if n == 1 else f"v[{a}:{a+n-1}]"
def s(a, n=1): return f"s{a}" if n == 1 else f"s[{a}:{a+n-1}]"
K1 = 1024
QST = 56 * K1
WQSLOT = 16416
GOFF = [0, 4104, 8208, 12312]
XST = QST + 4 * WQSLOT
XSLOT = 12288
assert XST + 3 * XSLOT <= 160 * K1
WOS = [128 * K1, 0, 32 * K1]
OXB = 64 * K1
def oxoff(idx): return idx * K1 + (8 * K1 if idx >= 40 else 0)
SX, SK, SV, SWQ, SWO, SWS = 24, 28, 32, 36, 40, 44
S_W, S_B, S_J, S_ROT = 20, 21, 22, 23
S_CNT, S_D, S_T0, S_T1, S_T2, S_T3, S_T4, S_T5 = 48, 49, 50, 51, 52, 53, 54, 55
S_STAMP = 64
QACC = 16
def qacc(T, r): return QACC + (T * 3 + r) * 4
FB = [112, 156]
def fwq(b, T): return FB[b] + 4 * T
def fx(b, r): return FB[b] + 32 + 4 * r
def qf(sx, r): return 208 + (sx * 3 + r) * 4
POOL = 16
BX, BZ, BY, LS, ONES, KAD, VAD = 48, 60, 72, 84, 96, 100, 104
def oacc(T, r): return 112 + (T * 3 + r) * 4
WQAD = 2
XAD = 6
XADB = 8
def mfma(d, a, b, c):
    cs = "0" if c is None else v(c, 4)
    return f"v_mfma_f32_16x16x32_bf16 {v(d,4)}, {v(a,4)}, {v(b,4)}, {cs}"
def trd(d, ad, off): return f"ds_read_b64_tr_b16 {v(d,2)}, {v(ad)} offset:{off}"
def rd128(d, ad, off): return f"ds_read_b128 {v(d,4)}, {v(ad)} offset:{off}"
def cvt(d, a, b): return f"v_cvt_pk_bf16_f32 {v(d)}, {v(a)}, {v(b)}"

nstamp = [0]
def stamp(name=""):
    if not OPT["stamps"]: return []
    i = nstamp[0]; nstamp[0] += 1
    assert i < 16
    return [f"s_memrealtime {s(S_STAMP + 2 * i, 2)}"]

def weave(mf, gaps, pre=None):
    out = []
    for i, m in enumerate(mf):
        if pre and i in pre: out += pre[i]
        out.append(m)
        out += gaps.get(i, [])
    return out

def prologue():
    L = []
    A = L.append
    A("s_cmp_ge_u32 s2, 256")
    A("s_cbranch_scc1 L_end")
    A("s_load_dwordx16 s[4:19], s[0:1], 0")
    L += stamp("start")
    A("v_lshrrev_b32 v1, 6, v0")
    A("v_and_b32 v0, 63, v0")
    A("s_and_b32 s50, s2, 7")
    A("s_lshr_b32 s51, s2, 3")
    A(f"v_readfirstlane_b32 {s(S_W)}, v1")
    A("s_and_b32 s52, s50, 3")
    A("s_lshl_b32 s52, s52, 2")
    A("s_and_b32 s53, s51, 3")
    A(f"s_add_u32 {s(S_J)}, s52, s53")
    A("s_lshr_b32 s52, s50, 2")
    A("s_lshl_b32 s52, s52, 3")
    A("s_lshr_b32 s53, s51, 2")
    A(f"s_add_u32 {s(S_B)}, s52, s53")
    if OPT["rot"]:
        A(f"s_lshl_b32 {s(S_ROT)}, s51, 1")
        A(f"s_and_b32 {s(S_ROT)}, {s(S_ROT)}, 15")
    else:
        A(f"s_mov_b32 {s(S_ROT)}, 0")
    A(f"s_lshl_b32 s54, {s(S_B)}, 4")
    A(f"s_add_u32 s54, s54, {s(S_J)}")
    A(f"s_mul_i32 s50, {s(S_B)}, 110592")
    A("s_lshl_b32 s51, s54, 17")
    A(f"s_lshl_b32 s52, {s(S_J)}, 9")
    A(f"s_mul_i32 s53, {s(S_J)}, {256*1152}")
    A("s_mul_i32 s55, s54, 110592")
    for srd, nrec in ((SX, 110592), (SK, 131072), (SV, 131072), (SWQ, 575 * 8192 + 512), (SWO, 256 * 1152), (SWS, 110592)):
        A(f"s_mov_b32 {s(srd+2)}, {nrec}")
        A(f"s_mov_b32 {s(srd+3)}, 0x20000")
    A("s_waitcnt lgkmcnt(0)")
    for srd, p, o in ((SX, 4, 50), (SK, 6, 51), (SV, 8, 51), (SWQ, 10, 52), (SWO, 12, 53), (SWS, 18, 55)):
        A(f"s_add_u32 {s(srd)}, {s(p)}, {s(o)}")
        A(f"s_addc_u32 {s(srd+1)}, {s(p+1)}, 0")
    A(f"s_cmp_ge_u32 {s(S_W)}, 4")
    A("s_cbranch_scc1 L_loaders")
    return L

def c_setup():
    L = []; A = L.append
    A("v_and_b32 v10, 15, v0")
    A("v_lshrrev_b32 v11, 4, v0")
    A("v_bfe_u32 v12, v0, 2, 2")
    A("v_and_b32 v13, 3, v0")
    A(f"s_lshr_b32 s50, {s(S_W)}, 1")
    A(f"s_and_b32 s51, {s(S_W)}, 1")
    A("v_mul_u32_u24 v14, 4104, v11")
    A("v_lshl_add_u32 v14, v12, 9, v14")
    A("v_lshl_add_u32 v14, v13, 4, v14")
    A("s_lshl_b32 s52, s50, 8")
    A(f"s_add_u32 s52, s52, {QST}")
    A("v_add_u32 v14, s52, v14")
    for sx in range(4):
        A(f"v_xor_b32 v15, {sx}, v12")
        A(f"v_lshl_add_u32 {v(WQAD+sx)}, v15, 6, v14")
    A("s_mul_i32 s52, s51, 6144")
    A(f"s_add_u32 s52, s52, {XST}")
    A("v_lshlrev_b32 v14, 7, v10")
    A("v_add_u32 v14, s52, v14")
    A("v_lshrrev_b32 v15, 1, v10")
    A("v_xor_b32 v15, v15, v11")
    A(f"v_lshl_add_u32 {v(XADB)}, v15, 4, v14")
    A(f"v_xor_b32 {v(XADB+1)}, 64, {v(XADB)}") if (XST % 128 == 0) else None
    assert XST % 128 == 0
    A(f"v_mov_b32 {v(XAD)}, {v(XADB)}")
    A(f"v_mov_b32 {v(XAD+1)}, {v(XADB+1)}")
    A(f"s_mov_b32 {s(S_D)}, {2*WQSLOT}")
    A(f"s_mov_b32 {s(S_T0)}, 0")
    A(f"s_mov_b32 {s(S_CNT)}, 9")
    return L

def q_reads(buf, wqoff, xad):
    R = []
    for r in range(3): R.append(rd128(fx(buf, r), xad, r * 2048))
    for T in range(8):
        sx, p = T >> 1, T & 1
        for h in range(2):
            R.append(trd(fwq(buf, T) + 2 * h, WQAD + sx, wqoff + h * 2048 + 8 * p))
    return R

def q_mfmas(buf, first=False):
    return [mfma(qacc(T, r), fwq(buf, T), fx(buf, r), None if first else qacc(T, r)) for T in range(8) for r in range(3)]

def q_step(buf, reads, extra=None):
    gaps = {}
    for i, r in enumerate(reads): gaps.setdefault(i, []).append(r)
    if extra:
        for k, x in extra.items(): gaps.setdefault(k, []).extend(x)
    return ["s_waitcnt lgkmcnt(0)", "s_barrier"] + weave(q_mfmas(buf), gaps)

def c_qproj():
    pro = [f"v_mov_b32 {v(QACC+i)}, 0" for i in range(96)]
    pro += ["s_barrier"] + stamp("B0") + q_reads(0, 0, XAD)
    exE = {19: [f"v_add_u32 {v(WQAD)}, {s(S_D)}, {v(WQAD)}", f"v_add_u32 {v(WQAD+1)}, {s(S_D)}, {v(WQAD+1)}"],
           20: [f"v_add_u32 {v(WQAD+2)}, {s(S_D)}, {v(WQAD+2)}", f"v_add_u32 {v(WQAD+3)}, {s(S_D)}, {v(WQAD+3)}"],
           3: [f"s_add_u32 {s(S_T0)}, {s(S_T0)}, {XSLOT}"],
           4: [f"s_cmp_eq_u32 {s(S_T0)}, {3*XSLOT}"],
           5: [f"s_cselect_b32 {s(S_T0)}, 0, {s(S_T0)}"],
           21: [f"v_add_u32 {v(XAD)}, {s(S_T0)}, {v(XADB)}", f"v_add_u32 {v(XAD+1)}, {s(S_T0)}, {v(XADB+1)}"],
           22: [f"s_sub_u32 {s(S_D)}, 0, {s(S_D)}", f"s_sub_u32 {s(S_CNT)}, {s(S_CNT)}, 1"],
           23: [f"s_cmp_eq_u32 {s(S_CNT)}, 0"]}
    E = q_step(0, q_reads(1, WQSLOT, XAD + 1), exE)
    O = q_step(1, q_reads(0, 0, XAD))
    z = [f"v_mov_b32 {v(112+i)}, 0" for i in range(44)]
    P17 = q_step(1, [], {i: z[2*i:2*i+2] for i in range(22)})
    code = pro + ["L_q:"] + E + ["s_cbranch_scc1 L_q17"] + O + ["s_branch L_q", "L_q17:"] + P17
    trace = pro + (E + ["s_cbranch_scc1 L_q17"] + O + ["s_branch L_q"]) * 8 + E + ["s_cbranch_scc1 L_q17"] + P17
    return code, trace

def c_qcvt():
    L = []; A = L.append
    L += stamp("qproj done")
    sc = (128 ** -0.5) * math.log2(math.e)
    A(f"s_mov_b32 s50, 0x{f2u(sc):08x}")
    A("s_mov_b32 s51, s50")
    for i in range(44, 96): A(f"v_mov_b32 {v(112+i)}, 0")
    order = [6, 7, 0, 1, 2, 3, 4, 5]
    def conv(T):
        o = []
        for r in range(3):
            a = qacc(T, r)
            o.append(f"v_pk_mul_f32 {v(a,2)}, {v(a,2)}, s[50:51]")
            o.append(f"v_pk_mul_f32 {v(a+2,2)}, {v(a+2,2)}, s[50:51]")
        for r in range(3):
            a = qacc(T, r); d = qf(T >> 1, r) + 2 * (T & 1)
            o.append(cvt(d, a, a + 1)); o.append(cvt(d + 1, a + 2, a + 3))
        return o
    for T in order[:5]: L += conv(T)
    for sx in range(4):
        A(f"v_xor_b32 v14, {4*sx}, v11")
        A("v_xor_b32 v14, v14, v10")
        A("v_lshlrev_b32 v14, 4, v14")
        A(f"v_lshl_add_u32 {v(KAD+sx)}, v10, 8, v14")
    for f in range(8): A(rd128(POOL + 4 * f, KAD + (f & 3), (f >> 2) * 4096))
    A("v_lshl_add_u32 v14, v11, 2, v12")
    A("v_lshlrev_b32 v15, 8, v14")
    A("v_lshl_add_u32 v15, v13, 3, v15")
    A("v_add_u32 v15, 8192, v15")
    A("v_and_b32 v14, 7, v14")
    for T in range(8):
        A(f"v_xor_b32 v1, {T}, v14")
        A(f"v_lshl_add_u32 {v(VAD+T)}, v1, 5, v15")
    for T in order[5:]: L += conv(T)
    for i in range(12): A(f"v_mov_b32 {v(LS+i)}, 0")
    for i in range(4): A(f"v_mov_b32 {v(ONES+i)}, 0x3f803f80")
    A(f"s_mov_b32 {s(S_D)}, {32*K1}")
    A(f"s_mov_b32 {s(S_CNT)}, 8")
    return L

E0G = [16, 19, 22, 25, 27, 28, 30, 31, 33, 34, 36, 37]
E1G = [39, 40, 42, 43, 45, 46, 48, 49]
E1N = [0, 1, 4, 7]
def ex(r): return f"v_exp_f32 {v(r)}, {v(r)}"

def half(odd, qk=True, pv=True):
    cur = BZ if odd else BX
    prv = BX if odd else BZ
    off = 0 if odd else 16 * K1
    mf = []
    for f in range(8):
        kt, sx = f >> 2, f & 3
        for r in range(3):
            d = (cur if kt == 0 else BY) + 4 * r
            mf.append(mfma(d, POOL + 4 * f, qf(sx, r), None if sx == 0 else d))
    for T in range(8):
        for r in range(3):
            mf.append(mfma(oacc(T, r), POOL + 4 * T, prv + 4 * r, oacc(T, r)))
    for r in range(3): mf.append(mfma(LS + 4 * r, ONES, prv + 4 * r, LS + 4 * r))
    G = {i: [] for i in range(51)}
    if pv:
        for T in range(8):
            G[3*T+2].append(trd(POOL + 4*T, VAD + T, off))
            G[3*T+3].append(trd(POOL + 4*T + 2, VAD + T, off + 4096))
        for i, g in enumerate(E1N): G[g].append(ex(BY + 8 + i))
        G[2].append(cvt(prv + 8 + 2, BY + 8, BY + 9))
        G[8].append(cvt(prv + 8 + 3, BY + 10, BY + 11))
    if qk:
        for f in range(8): G[24 + 3*f + 2].append(rd128(POOL + 4*f, KAD + (f & 3), off + (f >> 2) * 4096))
        for i, g in enumerate(E0G): G[g].append(ex(cur + i))
        for r, (g0, g1) in enumerate([(20, 26), (29, 32), (35, 38)]):
            G[g0].append(cvt(cur + 4*r, cur + 4*r, cur + 4*r + 1))
            G[g1].append(cvt(cur + 4*r + 1, cur + 4*r + 2, cur + 4*r + 3))
        for i, g in enumerate(E1G): G[g].append(ex(BY + i))
        for r, (g0, g1) in enumerate([(41, 44), (47, 50)]):
            G[g0].append(cvt(cur + 4*r + 2, BY + 4*r, BY + 4*r + 1))
            G[g1].append(cvt(cur + 4*r + 3, BY + 4*r + 2, BY + 4*r + 3))
    def xr(r): return f"v_xor_b32 {v(r)}, {s(S_D)}, {v(r)}"
    if qk and pv:
        if odd:
            G[10] += [xr(KAD), xr(KAD + 1)]; G[13] += [xr(KAD + 2), xr(KAD + 3)]
            G[17] += [f"s_sub_u32 {s(S_CNT)}, {s(S_CNT)}, 1"]
            G[50] += [f"s_cmp_eq_u32 {s(S_CNT)}, 0"]
        else:
            G[10] += [xr(VAD), xr(VAD + 1)]; G[13] += [xr(VAD + 2), xr(VAD + 3)]
            G[17] += [xr(VAD + 4)]; G[21] += [xr(VAD + 5)]; G[23] += [xr(VAD + 6)]
            G[50] += [xr(VAD + 7), f"s_xor_b32 {s(S_D)}, {s(S_D)}, {64*K1}"]
    pre = {0: ["s_waitcnt lgkmcnt(4)"], 12: ["s_waitcnt lgkmcnt(7)"], 24: ["s_waitcnt lgkmcnt(7)", "s_barrier"], 36: ["s_waitcnt lgkmcnt(4)"]}
    if qk and pv: return weave(mf, G, pre)
    out = []
    if qk:
        pre = {0: ["s_waitcnt lgkmcnt(4)"], 12: ["s_waitcnt lgkmcnt(0)"]}
        out = weave(mf[:24], G, pre) + ["s_barrier"]
        rest = []
        for g in range(24, 51): rest += G[g]
        out += [x for x in rest if x.startswith("ds_")]
        va = [x for x in rest if not x.startswith("ds_")]
        for a, b in zip(va, va[1:] + [""]):
            out.append(a)
            if a.startswith("v_exp") and b.startswith("v_cvt"): out.append("s_nop 0")
        return out
    out = ["s_waitcnt lgkmcnt(0)"]
    rest = []
    for g in range(0, 25): rest += G[g]
    out += [x for x in rest if x.startswith("ds_")]
    va = [x for x in rest if not x.startswith("ds_")]
    for a, b in zip(va, va[1:] + [""]):
        out.append(a)
        if a.startswith("v_exp") and b.startswith("v_cvt"): out.append("s_nop 0")
    pre = {0: ["s_waitcnt lgkmcnt(8)", "s_nop 0"], 12: ["s_waitcnt lgkmcnt(0)"]}
    out += ["s_nop 1"] + mf[48:51] + weave(mf[24:48], {}, pre)
    return out

def c_attn():
    P = stamp("attn start") + half(False, pv=False)
    B = half(True); Ah = half(False)
    E = half(False, qk=False)
    code = P + ["L_a:"] + B + ["s_cbranch_scc1 L_ae"] + Ah + ["s_branch L_a", "L_ae:"] + E
    trace = P + (B + ["s_cbranch_scc1 L_ae"] + Ah + ["s_branch L_a"]) * 7 + B + ["s_cbranch_scc1 L_ae"] + E
    return code, trace

def c_onorm():
    L = []; A = L.append
    L += stamp("attn done")
    for r in range(3): A(f"v_rcp_f32 {v(LS+4*r+1)}, {v(LS+4*r)}")
    A(f"s_lshr_b32 s50, {s(S_W)}, 1")
    A(f"s_and_b32 s51, {s(S_W)}, 1")
    A("s_mul_i32 s52, s50, 24")
    A("s_mul_i32 s53, s51, 3")
    A("s_add_u32 s52, s52, s53")
    A("v_lshlrev_b32 v10, 4, v0")
    A(f"v_add_u32 v11, {OXB}, v10")
    for r in range(3): A(f"v_mov_b32 {v(LS+4*r)}, {v(LS+4*r+1)}")
    for sp in range(4):
        for r in range(3):
            d = 16 + (sp * 3 + r) * 4
            for p in range(2):
                a = oacc(2 * sp + p, r)
                A(f"v_pk_mul_f32 {v(a,2)}, {v(a,2)}, {v(LS+4*r,2)}")
                A(f"v_pk_mul_f32 {v(a+2,2)}, {v(a+2,2)}, {v(LS+4*r,2)}")
            for p in range(2):
                a = oacc(2 * sp + p, r)
                A(cvt(d + 2*p, a, a + 1)); A(cvt(d + 2*p + 1, a + 2, a + 3))
            A(f"s_add_u32 s53, s52, {sp*6+r}")
            A("s_cmp_ge_u32 s53, 40")
            A("s_cselect_b32 s54, 8, 0")
            A("s_add_u32 s53, s53, s54")
            A("s_lshl_b32 s53, s53, 10")
            A("v_add_u32 v12, s53, v11")
            A(f"ds_write_b128 v12, {v(d,4)}")
    A("v_lshrrev_b32 v12, 2, v0")
    A("v_bfe_u32 v13, v0, 3, 2")
    A(f"v_xor_b32 v13, {s(S_W)}, v13")
    A("v_lshlrev_b32 v13, 5, v13")
    A("v_lshl_add_u32 v13, v12, 7, v13")
    A("v_and_b32 v12, 3, v0")
    A("v_lshl_add_u32 v2, v12, 3, v13")
    A(f"v_add_u32 v3, {WOS[0]}, v2")
    A(f"s_mov_b32 {s(S_T0)}, {WOS[0]}")
    A(f"s_mul_i32 {s(S_T1)}, {s(S_W)}, 3072")
    A(f"s_mov_b32 {s(S_CNT)}, 9")
    A("s_waitcnt lgkmcnt(0)")
    A("s_barrier")
    L += stamp("OX")
    for sg in range(3):
        for h in range(2): A(trd(48 + 4*sg + 2*h, 3, sg * 4096 + h * 2048))
    for i in range(48):
        A(rd128(64 + 4*i, 11, oxoff(i)))
        if i % 8 == 7: A("s_waitcnt lgkmcnt(6)")
    A("s_waitcnt lgkmcnt(0)")
    return L

OACC = 16
PK = [40, 44, 12]
def c_oproj():
    def grp(sg): return [mfma(OACC + 4*r, 48 + 4*(sg & 3), 64 + (sg*6 + r)*4, None if sg == 0 else OACC + 4*r) for r in range(6)]
    def rds(sg):
        return [trd(48 + 4*(sg & 3) + 2*h, 3, (sg & 7) * 4096 + h * 2048) for h in range(2)]
    def cv(r): return [cvt(PK[r >> 1] + 2*(r & 1), OACC + 4*r, OACC + 4*r + 1), cvt(PK[r >> 1] + 2*(r & 1) + 1, OACC + 4*r + 2, OACC + 4*r + 3)]
    def st(p): return f"buffer_store_dwordx4 {v(PK[p],4)}, v10, {s(SWS,4)}, {s(S_T1)} offen offset:{p*1024}"
    r3 = rds(3)
    pro = stamp("oproj start") + weave(grp(0), {0: [r3[0]], 1: [r3[1]]})
    body = []
    for sg in range(1, 8):
        rr = rds(sg + 3)
        G = {0: [rr[0]], 1: [rr[1]]}
        pre = {0: ["s_waitcnt lgkmcnt(4)"]}
        if sg == 4:
            G[2] = [f"s_add_u32 {s(S_T0)}, {s(S_T0)}, {32*K1}", f"s_cmp_eq_u32 {s(S_T0)}, {64*K1}"]
            G[3] = [f"s_cselect_b32 {s(S_T0)}, {128*K1}, {s(S_T0)}", f"s_cmp_eq_u32 {s(S_T0)}, {160*K1}"]
            G[4] = [f"s_cselect_b32 {s(S_T0)}, 0, {s(S_T0)}", f"s_sub_u32 {s(S_CNT)}, {s(S_CNT)}, 1"]
            G[5] = [f"v_add_u32 v3, {s(S_T0)}, v2", f"s_cmp_eq_u32 {s(S_CNT)}, 0"]
        if sg == 5:
            G = {2: ["s_waitcnt lgkmcnt(0)", "BARRIER_UNLESS_LAST"], 3: [rr[0]], 4: [rr[1]]}
        if sg in (6, 7): pre = {}
        body += weave(grp(sg), G, pre)
    nxt = weave(grp(0), {0: [r3[0]] + cv(1), 1: [r3[1]] + cv(2), 2: [st(0)] + cv(3), 3: cv(4), 4: [st(1)] + cv(5), 5: [st(2), f"s_add_u32 {s(S_T1)}, {s(S_T1)}, {4*3072}"]},
                {0: ["s_waitcnt lgkmcnt(4)"] + cv(0)})
    tail = ["s_nop 0"] + cv(0) + cv(1) + [st(0)] + cv(2) + cv(3) + [st(1)] + cv(4) + cv(5) + [st(2)]
    def rep(b, last):
        o = []
        for x in b:
            if x == "BARRIER_UNLESS_LAST":
                if last is None: o += ["s_cbranch_scc1 L_onb", "s_barrier", "L_onb:"]
                elif last: o += ["s_cbranch_scc1 L_onb"]
                else: o += ["s_cbranch_scc1 L_onb", "s_barrier"]
            else: o.append(x)
        return o
    code = pro + ["L_o:"] + rep(body, None) + ["s_cbranch_scc1 L_ot"] + nxt + ["s_branch L_o", "L_ot:"] + tail
    trace = pro + (rep(body, False) + ["s_cbranch_scc1 L_ot"] + nxt + ["s_branch L_o"]) * 8 + rep(body, True) + ["s_cbranch_scc1 L_ot"] + tail
    return code, trace

def c_finish():
    L = []
    if OPT["stamps"]:
        L += stamp("end issue")
        L += ["s_waitcnt vmcnt(0)"] + stamp("end")
        L += ["s_waitcnt lgkmcnt(0)",
              "s_add_u32 s56, s18, 0x2000000", "s_addc_u32 s57, s19, 0", "s_mov_b32 s58, 0x20000", "s_mov_b32 s59, 0x20000",
              "s_lshl_b32 s50, s2, 2", f"s_add_u32 s50, s50, {s(S_W)}", "s_lshl_b32 s50, s50, 7", "v_mov_b32 v1, 0"]
        for i in range(2 * nstamp[0]):
            L += [f"v_mov_b32 v2, {s(S_STAMP+i)}", f"buffer_store_dword v2, v1, s[56:59], s50 offen offset:{4*i}"]
    L += ["s_endpgm"]
    return L

def dma4(voffs, srd, soff, nt=False):
    return [f"buffer_load_dwordx4 {v(voffs[i])}, {s(srd,4)}, {s(soff)} offen offset:{1024*i}{' nt' if nt else ''} lds" for i in range(4)]

def bar(n): return ["s_barrier"] * n

def l_wq():
    L = []; A = L.append
    A(f"s_sub_u32 s60, {s(S_W)}, 4")
    A("v_lshrrev_b32 v10, 5, v0")
    A("v_bfe_u32 v11, v0, 2, 2")
    A("v_and_b32 v12, 0x13, v0")
    A("v_lshlrev_b32 v12, 4, v12")
    for i in range(4):
        A(f"v_add_u32 v13, {2*i}, v10")
        A("v_and_b32 v14, 3, v13")
        A("v_xor_b32 v14, v14, v11")
        A("v_lshl_add_u32 v14, v14, 6, v12")
        A("v_lshl_add_u32 v14, v13, 13, v14")
        A(f"v_subrev_u32 {v(2+i)}, {1024*i}, v14")
    A("v_lshrrev_b32 v10, 3, v0")
    A("v_mul_u32_u24 v10, 1152, v10")
    A("v_bfe_u32 v11, v0, 1, 2")
    A("v_lshrrev_b32 v12, 4, v0")
    A("v_xor_b32 v11, v11, v12")
    A("v_lshl_add_u32 v10, v11, 5, v10")
    A("v_and_b32 v11, 1, v0")
    A("v_lshl_add_u32 v10, v11, 4, v10")
    for i in range(4): A(f"v_add_u32 {v(6+i)}, {i*(8*1152-1024)}, v10")
    A(f"s_mul_i32 s56, s60, {GOFF[2]}")
    A(f"s_add_u32 s56, s56, {QST}")
    A("s_mov_b32 s61, s56")
    A(f"s_add_u32 s57, s56, {4*WQSLOT}")
    A(f"s_lshl_b32 s62, s60, {4+13}")
    def issue():
        return (["s_mov_b32 m0, s61", f"s_add_u32 s63, s62, {8*8192}"] + dma4([2,3,4,5], SWQ, 62) +
                [f"s_add_u32 m0, s61, {GOFF[1]}", f"s_add_u32 s61, s61, {WQSLOT}"] + dma4([2,3,4,5], SWQ, 63) +
                [f"s_add_u32 s62, s62, {32*8192}", "s_cmp_eq_u32 s61, s57", "s_cselect_b32 s61, s56, s61"])
    pro = L + [f"s_mov_b32 {s(S_CNT)}, 18"]
    body = issue() + [f"s_sub_u32 {s(S_CNT)}, {s(S_CNT)}, 1", f"s_cmp_gt_u32 {s(S_CNT)}, 15"]
    wb = ["s_waitcnt vmcnt(16)", "s_barrier", f"s_cmp_gt_u32 {s(S_CNT)}, 0"]
    mid = ["s_waitcnt vmcnt(8)", "s_barrier", "s_waitcnt vmcnt(0)", "s_barrier", "s_barrier"]
    mid += [f"s_lshl_b32 s56, s60, 14", f"s_mul_i32 s62, s60, {128*1152}", f"s_movk_i32 s58, 0"]
    def wissue(slot_expr):
        o = slot_expr
        for q in range(4):
            o += [f"s_add_u32 m0, s61, {q*4096}", f"s_add_u32 s63, s62, {q*32*1152}"] + dma4([6,7,8,9], SWO, 63)
        o += ["s_add_u32 s62, s62, 128"]
        return o
    def slot_const(k): return [f"s_add_u32 s61, s56, {WOS[k]}"]
    att = bar(8) + wissue(slot_const(0)) + bar(4) + wissue(slot_const(1)) + bar(2) + wissue(slot_const(2)) + bar(2)
    att += ["s_waitcnt vmcnt(32)", "s_barrier", f"s_mov_b32 {s(S_CNT)}, 6", f"s_mov_b32 s58, {WOS[0]}"]
    nextslot = ["s_add_u32 s61, s56, s58", f"s_add_u32 s58, s58, {32*K1}", f"s_cmp_eq_u32 s58, {64*K1}", f"s_cselect_b32 s58, {128*K1}, s58",
                f"s_cmp_eq_u32 s58, {160*K1}", "s_cselect_b32 s58, 0, s58"]
    wbody = ["s_waitcnt vmcnt(16)", "s_barrier"] + wissue(nextslot) + [f"s_sub_u32 {s(S_CNT)}, {s(S_CNT)}, 1", f"s_cmp_gt_u32 {s(S_CNT)}, 0"]
    fin = ["s_waitcnt vmcnt(16)", "s_barrier", "s_waitcnt vmcnt(0)", "s_barrier", "s_endpgm"]
    code = pro + ["L_wq:"] + body + ["s_cbranch_scc1 L_wq"] + wb + ["s_cbranch_scc1 L_wq"] + mid + att + ["L_wo:"] + wbody + ["s_cbranch_scc1 L_wo"] + fin
    trace = pro + (body + ["s_cbranch_scc1 L_wq"]) * 2 + (body + ["s_cbranch_scc1 L_wq"] + wb + ["s_cbranch_scc1 L_wq"]) * 16 + mid + att + (wbody + ["s_cbranch_scc1 L_wo"]) * 6 + fin
    return code, trace

def kv_voffs(kind, base):
    L = []; A = L.append
    A("v_lshrrev_b32 v10, 4, v0")
    A("v_and_b32 v11, 15, v0")
    A("v_lshlrev_b32 v13, 8, v10")
    for i in range(4 if kind == "K" else 2):
        A(f"v_add_u32 v12, {4*i}, v10")
        if kind == "V": A("v_lshlrev_b32 v12, 1, v12")
        A("v_xor_b32 v12, v12, v11")
        A(f"v_lshl_add_u32 {v(base+i)}, v12, 4, v13")
    return L

def kv_tile(kind, vo, st):
    srd = SK if kind == "K" else SV
    regs = [vo, vo+1, vo+2, vo+3] if kind == "K" else [vo, vo+1, vo, vo+1]
    o = [f"s_and_b32 s56, {s(st)}, 7", "s_lshl_b32 s56, s56, 14"]
    if kind == "V": o += ["s_add_u32 s56, s56, 8192"]
    o += [f"s_add_u32 s57, {s(st)}, {s(S_ROT)}", "s_and_b32 s57, s57, 15", "s_mov_b32 m0, s56", "s_lshl_b32 s57, s57, 13"]
    o += dma4(regs, srd, 57, nt=True)
    o += ["s_add_u32 m0, s56, 4096", "s_add_u32 s57, s57, 4096"] + dma4(regs, srd, 57, nt=True)
    o += [f"s_add_u32 {s(st)}, {s(st)}, 1"]
    return o

def l_x():
    L = []; A = L.append
    A("v_lshrrev_b32 v10, 3, v0")
    A("v_mul_u32_u24 v10, 1152, v10")
    A("v_and_b32 v11, 7, v0")
    A("v_lshrrev_b32 v12, 4, v0")
    for i in range(4):
        A(f"v_xor_b32 v13, {4*(i&1)}, v12")
        A("v_xor_b32 v13, v13, v11")
        A("v_lshl_add_u32 v13, v13, 4, v10")
        A(f"v_add_u32 {v(2+i)}, {i*(8*1152-1024)}, v13")
    A(f"s_mov_b32 s61, {XST}")
    A("s_mov_b32 s62, 0")
    def issue():
        o = []
        for q in range(3):
            o += [f"s_add_u32 m0, s61, {q*4096}", f"s_add_u32 s63, s62, {q*32*1152}"] + dma4([2,3,4,5], SX, 63)
        o += ["s_add_u32 s62, s62, 128", f"s_add_u32 s61, s61, {XSLOT}", f"s_cmp_eq_u32 s61, {XST+3*XSLOT}", f"s_cselect_b32 s61, {XST}, s61"]
        return o
    pro = L + [f"s_mov_b32 {s(S_CNT)}, 9"]
    body = issue() + [f"s_sub_u32 {s(S_CNT)}, {s(S_CNT)}, 1", f"s_cmp_gt_u32 {s(S_CNT)}, 6"]
    b0 = [f"s_cmp_lt_u32 {s(S_CNT)}, 6"]
    b0b = ["s_waitcnt vmcnt(24)", "s_barrier"]
    wb = ["s_barrier", "s_waitcnt vmcnt(12)", "s_barrier", f"s_cmp_gt_u32 {s(S_CNT)}, 0"]
    mid = ["s_barrier", "s_waitcnt vmcnt(0)", "s_barrier"] + kv_voffs("V", 6) + ["s_barrier", "s_barrier", "s_mov_b32 s60, 3"]
    vb = kv_tile("V", 6, 60) + ["s_cmp_lt_u32 s60, 6"]
    vw = ["s_waitcnt vmcnt(40)", "s_barrier", "s_cmp_lt_u32 s60, 16"]
    fin = []
    for q in range(12, 17): fin += [f"s_waitcnt vmcnt({8*(15-(q-1))})", "s_barrier"]
    fin += bar(9) + ["s_endpgm"]
    code = (pro + ["L_x:"] + body + ["s_cbranch_scc1 L_x"] + b0 + ["s_cbranch_scc1 L_x1"] + b0b + ["L_x1:"] + wb + ["s_cbranch_scc1 L_x"] + mid +
            ["L_v:"] + vb + ["s_cbranch_scc1 L_v"] + vw + ["s_cbranch_scc1 L_v"] + fin)
    trace = pro + body * 2 + body + b0 + b0b + wb + (body + b0 + wb) * 6 + mid + vb * 2 + (vb + vw) * 11 + fin
    return code, trace

def l_k():
    pro = kv_voffs("K", 2) + kv_voffs("V", 6) + ["s_mov_b32 s60, 0", "s_mov_b32 s61, 0"]
    eb = ["s_barrier"] + kv_tile("K", 2, 60) + ["s_cmp_eq_u32 s60, 4"]
    eb2 = ["s_barrier"] + kv_tile("V", 6, 61)
    mid = bar(11) + ["s_waitcnt vmcnt(0)", "s_barrier"]
    kb = kv_tile("K", 2, 60) + ["s_cmp_lt_u32 s60, 8"]
    kw = ["s_waitcnt vmcnt(48)", "s_barrier", "s_cmp_lt_u32 s60, 16"]
    fin = []
    for q in range(10, 16): fin += [f"s_waitcnt vmcnt({8*(15-q)})", "s_barrier"]
    fin += bar(1 + 9) + ["s_endpgm"]
    code = (pro + ["L_e:"] + eb + ["s_cbranch_scc1 L_e1"] + eb2 + ["s_branch L_e", "L_e1:"] + mid +
            ["L_k:"] + kb + ["s_cbranch_scc1 L_k"] + kw + ["s_cbranch_scc1 L_k"] + fin)
    trace = pro + (eb + eb2) * 3 + eb + mid + kb * 3 + (kb + kw) * 9 + fin
    return code, trace

def reduce_kernel():
    L = []; A = L.append
    A("s_cmp_ge_u32 s2, 27")
    A("s_cbranch_scc1 L_rend")
    A("s_load_dwordx2 s[4:5], s[0:1], 40")
    A("s_load_dwordx2 s[6:7], s[0:1], 56")
    A("v_lshrrev_b32 v1, 6, v0")
    A("v_lshlrev_b32 v2, 4, v0")
    A("s_lshl_b32 s20, s2, 12")
    A("v_readfirstlane_b32 s21, v1")
    A("v_add_u32 v2, s20, v2")
    A(f"s_mul_i32 s22, s3, {16*110592}")
    A("s_mul_i32 s23, s3, 110592")
    A(f"s_mov_b32 s10, {16*110592}"); A("s_mov_b32 s11, 0x20000")
    A("s_mov_b32 s14, 110592"); A("s_mov_b32 s15, 0x20000")
    A("s_waitcnt lgkmcnt(0)")
    A("s_add_u32 s8, s6, s22"); A("s_addc_u32 s9, s7, 0")
    A("s_add_u32 s12, s4, s23"); A("s_addc_u32 s13, s5, 0")
    A("s_mov_b32 s24, 0")
    for j in range(16):
        A(f"buffer_load_dwordx4 {v(16+4*j,4)}, v2, s[8:11], s24 offen")
        if j < 15: A("s_add_u32 s24, s24, 110592")
    A("s_lshl_b32 s20, s2, 2"); A("s_add_u32 s20, s20, s21")
    A("s_mul_i32 s22, s20, 43"); A("s_lshr_b32 s22, s22, 7")
    A("s_mul_i32 s23, s22, 3"); A("s_sub_u32 s23, s20, s23")
    A(f"s_mul_i32 s23, s23, {32*1152}"); A("s_lshl_b32 s22, s22, 5"); A("s_add_u32 s22, s22, s23")
    A(f"s_add_u32 s23, s22, {16*1152}")
    A("v_and_b32 v3, 15, v0"); A("v_mul_u32_u24 v3, 1152, v3")
    A("v_bfe_u32 v4, v0, 4, 2"); A("v_lshl_add_u32 v3, v4, 3, v3")
    A("s_mov_b32 s25, 0xffff0000")
    for j in range(16):
        A(f"s_waitcnt vmcnt({15-j})")
        for i in range(4):
            r = 16 + 4*j + i
            if j == 0:
                A(f"v_lshlrev_b32 {v(8+2*i)}, 16, {v(r)}"); A(f"v_and_b32 {v(9+2*i)}, s25, {v(r)}")
            else:
                A(f"v_lshlrev_b32 v4, 16, {v(r)}"); A(f"v_and_b32 v5, s25, {v(r)}")
                A(f"v_pk_add_f32 {v(8+2*i,2)}, {v(8+2*i,2)}, v[4:5]")
    for i in range(4): A(cvt(4 + i, 8 + 2*i, 9 + 2*i))
    A("buffer_store_dwordx2 v[4:5], v3, s[12:15], s22 offen")
    A("buffer_store_dwordx2 v[6:7], v3, s[12:15], s23 offen")
    A("L_rend:")
    A("s_endpgm")
    return L

def build():
    pro = prologue()
    cs = c_setup(); qc, qt = c_qproj(); qv = c_qcvt(); ac, at = c_attn(); on = c_onorm(); oc, ot = c_oproj(); fi = c_finish()
    wqc, wqt = l_wq(); xc, xt = l_x(); kc, kt = l_k()
    disp = ["L_loaders:", f"s_cmp_eq_u32 {s(S_W)}, 6", "s_cbranch_scc1 L_ldx", f"s_cmp_eq_u32 {s(S_W)}, 7", "s_cbranch_scc1 L_ldk"]
    code = pro + cs + qc + qv + ac + on + oc + fi + disp + wqc + ["L_ldx:"] + xc + ["L_ldk:"] + kc + ["L_end:", "s_endpgm"]
    red = reduce_kernel()
    if OPT["check"]:
        tot = 0; nb = set()
        for nm, tr in (("compute", pro + cs + qt + qv + at + on + ot + fi), ("wq", pro + wqt), ("x", pro + xt), ("k", pro + kt), ("red", red)):
            e, b = chk.check(tr, nm)
            tot += e
            if nm != "red": nb.add(b)
        assert len(nb) == 1, f"barrier mismatch {nb}"
    def fmt(L): return "\n".join(x if x.endswith(":") else "    " + x for x in L)
    def desc(name, vg, y):
        return f""".amdhsa_kernel {name}
  .amdhsa_next_free_vgpr {vg}
  .amdhsa_next_free_sgpr 102
  .amdhsa_accum_offset {vg}
  .amdhsa_group_segment_fixed_size 0
  .amdhsa_kernarg_size 64
  .amdhsa_user_sgpr_count 2
  .amdhsa_user_sgpr_kernarg_segment_ptr 1
  .amdhsa_system_sgpr_workgroup_id_x 1
""" + ("  .amdhsa_system_sgpr_workgroup_id_y 1\n" if y else "") + ".end_amdhsa_kernel\n"
    return f"""; Fused GQA block: Q-proj + attention + O-proj partials per (batch, kv head) workgroup, then a reduce launch.
; @launch kernel={KMAIN} grid=(256,1,1) block=(512,1,1) lds=163840
; @launch kernel={KRED} grid=(27,16,1) block=(256,1,1) lds=0
.amdgcn_target "amdgcn-amd-amdhsa--gfx950"
.text
.globl {KMAIN}
.p2align 8
.type {KMAIN},@function
{KMAIN}:
{fmt(code)}
.globl {KRED}
.p2align 8
.type {KRED},@function
{KRED}:
{fmt(red)}
.section .rodata,"a"
.p2align 6
{desc(KMAIN, 256, False)}.p2align 6
{desc(KRED, 80, True)}"""

if __name__ == "__main__":
    out = sys.argv[1]
    for a in sys.argv[2:]:
        k, val = a.split("=")
        OPT[k] = int(val) if val.lstrip("-").isdigit() else val
    open(out, "w").write(build())
```

```python
import sys, struct, math
sys.path.insert(0, "work")
import chk

KMAIN = "standalone__gqa_block_cached__near_ridge_kernel"
KRED = "gqa_reduce_kernel"
OPT = dict(stamps=0, dbg="", rot=1, check=1, nodma=())

def f2u(x): return struct.unpack("<I", struct.pack("<f", x))[0]
def v(a, n=1): return f"v{a}" if n == 1 else f"v[{a}:{a+n-1}]"
def s(a, n=1): return f"s{a}" if n == 1 else f"s[{a}:{a+n-1}]"
K1 = 1024
QST = 56 * K1
WQSLOT = 16416
GOFF = [0, 4104, 8208, 12312]
XST = QST + 4 * WQSLOT
XSLOT = 12288
assert XST + 3 * XSLOT <= 160 * K1
WOS = [128 * K1, 0, 32 * K1]
OXB = 64 * K1
def oxoff(idx): return idx * K1 + (8 * K1 if idx >= 40 else 0)
SX, SK, SV, SWQ, SWO, SWS = 24, 28, 32, 36, 40, 44
S_W, S_B, S_J, S_ROT = 20, 21, 22, 23
S_CNT, S_D, S_T0, S_T1, S_T2, S_T3, S_T4, S_T5 = 48, 49, 50, 51, 52, 53, 54, 55
S_STAMP = 64
QACC = 16
def qacc(T, r): return QACC + (T * 3 + r) * 4
FB = [112, 156]
def fwq(b, T): return FB[b] + 4 * T
def fx(b, r): return FB[b] + 32 + 4 * r
def qf(sx, r): return 208 + (sx * 3 + r) * 4
POOL = 16
BX, BZ, BY, LS, ONES, KAD, VAD = 48, 60, 72, 84, 96, 100, 104
def oacc(T, r): return 112 + (T * 3 + r) * 4
WQAD = 2
XAD = 6
XADB = 8
def mfma(d, a, b, c):
    cs = "0" if c is None else v(c, 4)
    return f"v_mfma_f32_16x16x32_bf16 {v(d,4)}, {v(a,4)}, {v(b,4)}, {cs}"
def trd(d, ad, off): return f"ds_read_b64_tr_b16 {v(d,2)}, {v(ad)} offset:{off}"
def rd128(d, ad, off): return f"ds_read_b128 {v(d,4)}, {v(ad)} offset:{off}"
def cvt(d, a, b): return f"v_cvt_pk_bf16_f32 {v(d)}, {v(a)}, {v(b)}"

nstamp = [0]
def stamp(name=""):
    if not OPT["stamps"]: return []
    i = nstamp[0]; nstamp[0] += 1
    assert i < 16
    op = "s_memtime" if OPT["stamps"] == 2 else "s_memrealtime"
    return [f"{op} {s(S_STAMP + 2 * i, 2)}  ; stamp {i} {name}"]

def weave(mf, gaps, pre=None):
    out = []
    for i, m in enumerate(mf):
        if pre and i in pre: out += pre[i]
        out.append(m)
        out += gaps.get(i, [])
    return out

def prologue():
    L = []
    A = L.append
    A("s_cmp_ge_u32 s2, 256")
    A("s_cbranch_scc1 L_end")
    A("s_load_dwordx16 s[4:19], s[0:1], 0")
    L += stamp("start")
    A("v_lshrrev_b32 v1, 6, v0")
    A("v_and_b32 v0, 63, v0")
    A("s_and_b32 s50, s2, 7")
    A("s_lshr_b32 s51, s2, 3")
    A(f"v_readfirstlane_b32 {s(S_W)}, v1")
    A("s_and_b32 s52, s50, 3")
    A("s_lshl_b32 s52, s52, 2")
    A("s_and_b32 s53, s51, 3")
    A(f"s_add_u32 {s(S_J)}, s52, s53")
    A("s_lshr_b32 s52, s50, 2")
    A("s_lshl_b32 s52, s52, 3")
    A("s_lshr_b32 s53, s51, 2")
    A(f"s_add_u32 {s(S_B)}, s52, s53")
    if OPT["rot"]:
        A(f"s_lshl_b32 {s(S_ROT)}, s51, 1")
        A(f"s_and_b32 {s(S_ROT)}, {s(S_ROT)}, 15")
    else:
        A(f"s_mov_b32 {s(S_ROT)}, 0")
    A(f"s_lshl_b32 s54, {s(S_B)}, 4")
    A(f"s_add_u32 s54, s54, {s(S_J)}")
    A(f"s_mul_i32 s50, {s(S_B)}, 110592")
    A("s_lshl_b32 s51, s54, 17")
    A(f"s_lshl_b32 s52, {s(S_J)}, 9")
    A(f"s_mul_i32 s53, {s(S_J)}, {256*1152}")
    A("s_mul_i32 s55, s54, 110592")
    for srd, nrec in ((SX, 110592), (SK, 131072), (SV, 131072), (SWQ, 575 * 8192 + 512), (SWO, 256 * 1152), (SWS, 110592)):
        A(f"s_mov_b32 {s(srd+2)}, {nrec}")
        A(f"s_mov_b32 {s(srd+3)}, 0x20000")
    A("s_waitcnt lgkmcnt(0)")
    for srd, p, o in ((SX, 4, 50), (SK, 6, 51), (SV, 8, 51), (SWQ, 10, 52), (SWO, 12, 53), (SWS, 18, 55)):
        A(f"s_add_u32 {s(srd)}, {s(p)}, {s(o)}")
        A(f"s_addc_u32 {s(srd+1)}, {s(p+1)}, 0")
    A(f"s_cmp_ge_u32 {s(S_W)}, 4")
    A("s_cbranch_scc1 L_loaders")
    return L

def c_setup():
    L = []; A = L.append
    A("v_and_b32 v10, 15, v0")
    A("v_lshrrev_b32 v11, 4, v0")
    A("v_bfe_u32 v12, v0, 2, 2")
    A("v_and_b32 v13, 3, v0")
    A(f"s_lshr_b32 s50, {s(S_W)}, 1")
    A(f"s_and_b32 s51, {s(S_W)}, 1")
    A("v_mul_u32_u24 v14, 4104, v11")
    A("v_lshl_add_u32 v14, v12, 9, v14")
    A("v_lshl_add_u32 v14, v13, 4, v14")
    A("s_lshl_b32 s52, s50, 8")
    A(f"s_add_u32 s52, s52, {QST}")
    A("v_add_u32 v14, s52, v14")
    for sx in range(4):
        A(f"v_xor_b32 v15, {sx}, v12")
        A(f"v_lshl_add_u32 {v(WQAD+sx)}, v15, 6, v14")
    A("s_mul_i32 s52, s51, 6144")
    A(f"s_add_u32 s52, s52, {XST}")
    A("v_lshlrev_b32 v14, 7, v10")
    A("v_add_u32 v14, s52, v14")
    A("v_lshrrev_b32 v15, 1, v10")
    A("v_xor_b32 v15, v15, v11")
    A(f"v_lshl_add_u32 {v(XADB)}, v15, 4, v14")
    A(f"v_xor_b32 {v(XADB+1)}, 64, {v(XADB)}") if (XST % 128 == 0) else None
    assert XST % 128 == 0
    A(f"v_mov_b32 {v(XAD)}, {v(XADB)}")
    A(f"v_mov_b32 {v(XAD+1)}, {v(XADB+1)}")
    A(f"s_mov_b32 {s(S_D)}, {2*WQSLOT}")
    A(f"s_mov_b32 {s(S_T0)}, 0")
    A(f"s_mov_b32 {s(S_CNT)}, 9")
    return L

def q_reads(buf, wqoff, xad):
    R = []
    for r in range(3): R.append(rd128(fx(buf, r), xad, r * 2048))
    for T in range(8):
        sx, p = T >> 1, T & 1
        for h in range(2):
            R.append(trd(fwq(buf, T) + 2 * h, WQAD + sx, wqoff + h * 2048 + 8 * p))
    return R

def q_mfmas(buf, first=False):
    return [mfma(qacc(T, r), fwq(buf, T), fx(buf, r), None if first else qacc(T, r)) for T in range(8) for r in range(3)]

def q_step(buf, reads, extra=None):
    gaps = {}
    for i, r in enumerate(reads): gaps.setdefault(i, []).append(r)
    if extra:
        for k, x in extra.items(): gaps.setdefault(k, []).extend(x)
    return ["s_waitcnt lgkmcnt(0)", "s_barrier"] + weave(q_mfmas(buf), gaps)

def c_qproj():
    pro = [f"v_mov_b32 {v(QACC+i)}, 0" for i in range(96)]
    pro += ["s_barrier"] + stamp("B0") + q_reads(0, 0, XAD)
    exE = {19: [f"v_add_u32 {v(WQAD)}, {s(S_D)}, {v(WQAD)}", f"v_add_u32 {v(WQAD+1)}, {s(S_D)}, {v(WQAD+1)}"],
           20: [f"v_add_u32 {v(WQAD+2)}, {s(S_D)}, {v(WQAD+2)}", f"v_add_u32 {v(WQAD+3)}, {s(S_D)}, {v(WQAD+3)}"],
           3: [f"s_add_u32 {s(S_T0)}, {s(S_T0)}, {XSLOT}"],
           4: [f"s_cmp_eq_u32 {s(S_T0)}, {3*XSLOT}"],
           5: [f"s_cselect_b32 {s(S_T0)}, 0, {s(S_T0)}"],
           21: [f"v_add_u32 {v(XAD)}, {s(S_T0)}, {v(XADB)}", f"v_add_u32 {v(XAD+1)}, {s(S_T0)}, {v(XADB+1)}"],
           22: [f"s_sub_u32 {s(S_D)}, 0, {s(S_D)}", f"s_sub_u32 {s(S_CNT)}, {s(S_CNT)}, 1"],
           23: [f"s_cmp_eq_u32 {s(S_CNT)}, 0"]}
    E = q_step(0, q_reads(1, WQSLOT, XAD + 1), exE)
    O = q_step(1, q_reads(0, 0, XAD))
    z = [f"v_mov_b32 {v(112+i)}, 0" for i in range(44)]
    P17 = q_step(1, [], {i: z[2*i:2*i+2] for i in range(22)})
    code = pro + ["L_q:"] + E + ["s_cbranch_scc1 L_q17"] + O + ["s_branch L_q", "L_q17:"] + P17
    trace = pro + (E + ["s_cbranch_scc1 L_q17"] + O + ["s_branch L_q"]) * 8 + E + ["s_cbranch_scc1 L_q17"] + P17
    return code, trace

def c_qcvt():
    L = []; A = L.append
    L += stamp("qproj done")
    sc = (128 ** -0.5) * math.log2(math.e)
    A(f"s_mov_b32 s50, 0x{f2u(sc):08x}")
    A("s_mov_b32 s51, s50")
    for i in range(44, 96): A(f"v_mov_b32 {v(112+i)}, 0")
    order = [6, 7, 0, 1, 2, 3, 4, 5]
    def conv(T):
        o = []
        for r in range(3):
            a = qacc(T, r)
            o.append(f"v_pk_mul_f32 {v(a,2)}, {v(a,2)}, s[50:51]")
            o.append(f"v_pk_mul_f32 {v(a+2,2)}, {v(a+2,2)}, s[50:51]")
        for r in range(3):
            a = qacc(T, r); d = qf(T >> 1, r) + 2 * (T & 1)
            o.append(cvt(d, a, a + 1)); o.append(cvt(d + 1, a + 2, a + 3))
        return o
    for T in order[:5]: L += conv(T)
    for sx in range(4):
        A(f"v_xor_b32 v14, {4*sx}, v11")
        A("v_xor_b32 v14, v14, v10")
        A("v_lshlrev_b32 v14, 4, v14")
        A(f"v_lshl_add_u32 {v(KAD+sx)}, v10, 8, v14")
    for f in range(8): A(rd128(POOL + 4 * f, KAD + (f & 3), (f >> 2) * 4096))
    A("v_lshl_add_u32 v14, v11, 2, v12")
    A("v_lshlrev_b32 v15, 8, v14")
    A("v_lshl_add_u32 v15, v13, 3, v15")
    A("v_add_u32 v15, 8192, v15")
    A("v_and_b32 v14, 7, v14")
    for T in range(8):
        A(f"v_xor_b32 v1, {T}, v14")
        A(f"v_lshl_add_u32 {v(VAD+T)}, v1, 5, v15")
    for T in order[5:]: L += conv(T)
    for i in range(12): A(f"v_mov_b32 {v(LS+i)}, 0")
    for i in range(4): A(f"v_mov_b32 {v(ONES+i)}, 0x3f803f80")
    A(f"s_mov_b32 {s(S_D)}, {32*K1}")
    A(f"s_mov_b32 {s(S_CNT)}, 8")
    return L

E0G = [16, 19, 22, 25, 27, 28, 30, 31, 33, 34, 36, 37]
E1G = [39, 40, 42, 43, 45, 46, 48, 49]
E1N = [0, 1, 4, 7]
def ex(r): return f"v_exp_f32 {v(r)}, {v(r)}"

def half(odd, qk=True, pv=True):
    cur = BZ if odd else BX
    prv = BX if odd else BZ
    off = 0 if odd else 16 * K1
    mf = []
    for f in range(8):
        kt, sx = f >> 2, f & 3
        for r in range(3):
            d = (cur if kt == 0 else BY) + 4 * r
            mf.append(mfma(d, POOL + 4 * f, qf(sx, r), None if sx == 0 else d))
    for T in range(8):
        for r in range(3):
            mf.append(mfma(oacc(T, r), POOL + 4 * T, prv + 4 * r, oacc(T, r)))
    for r in range(3): mf.append(mfma(LS + 4 * r, ONES, prv + 4 * r, LS + 4 * r))
    G = {i: [] for i in range(51)}
    if pv:
        for T in range(8):
            G[3*T+2].append(trd(POOL + 4*T, VAD + T, off))
            G[3*T+3].append(trd(POOL + 4*T + 2, VAD + T, off + 4096))
        for i, g in enumerate(E1N): G[g].append(ex(BY + 8 + i))
        G[2].append(cvt(prv + 8 + 2, BY + 8, BY + 9))
        G[8].append(cvt(prv + 8 + 3, BY + 10, BY + 11))
    if qk:
        for f in range(8): G[24 + 3*f + 2].append(rd128(POOL + 4*f, KAD + (f & 3), off + (f >> 2) * 4096))
        for i, g in enumerate(E0G): G[g].append(ex(cur + i))
        for r, (g0, g1) in enumerate([(20, 26), (29, 32), (35, 38)]):
            G[g0].append(cvt(cur + 4*r, cur + 4*r, cur + 4*r + 1))
            G[g1].append(cvt(cur + 4*r + 1, cur + 4*r + 2, cur + 4*r + 3))
        for i, g in enumerate(E1G): G[g].append(ex(BY + i))
        for r, (g0, g1) in enumerate([(41, 44), (47, 50)]):
            G[g0].append(cvt(cur + 4*r + 2, BY + 4*r, BY + 4*r + 1))
            G[g1].append(cvt(cur + 4*r + 3, BY + 4*r + 2, BY + 4*r + 3))
    def xr(r): return f"v_xor_b32 {v(r)}, {s(S_D)}, {v(r)}"
    if qk and pv:
        if odd:
            G[10] += [xr(KAD), xr(KAD + 1)]; G[13] += [xr(KAD + 2), xr(KAD + 3)]
            G[17] += [f"s_sub_u32 {s(S_CNT)}, {s(S_CNT)}, 1"]
            G[50] += [f"s_cmp_eq_u32 {s(S_CNT)}, 0"]
        else:
            G[10] += [xr(VAD), xr(VAD + 1)]; G[13] += [xr(VAD + 2), xr(VAD + 3)]
            G[17] += [xr(VAD + 4)]; G[21] += [xr(VAD + 5)]; G[23] += [xr(VAD + 6)]
            G[50] += [xr(VAD + 7), f"s_xor_b32 {s(S_D)}, {s(S_D)}, {64*K1}"]
    pre = {0: ["s_waitcnt lgkmcnt(4)"], 12: ["s_waitcnt lgkmcnt(7)"], 24: ["s_waitcnt lgkmcnt(7)", "s_barrier"], 36: ["s_waitcnt lgkmcnt(4)"]}
    if qk and pv: return weave(mf, G, pre)
    out = []
    if qk:
        pre = {0: ["s_waitcnt lgkmcnt(4)"], 12: ["s_waitcnt lgkmcnt(0)"]}
        out = weave(mf[:24], G, pre) + ["s_barrier"]
        rest = []
        for g in range(24, 51): rest += G[g]
        out += [x for x in rest if x.startswith("ds_")]
        va = [x for x in rest if not x.startswith("ds_")]
        for a, b in zip(va, va[1:] + [""]):
            out.append(a)
            if a.startswith("v_exp") and b.startswith("v_cvt"): out.append("s_nop 0")
        return out
    out = ["s_waitcnt lgkmcnt(0)"]
    rest = []
    for g in range(0, 25): rest += G[g]
    out += [x for x in rest if x.startswith("ds_")]
    va = [x for x in rest if not x.startswith("ds_")]
    for a, b in zip(va, va[1:] + [""]):
        out.append(a)
        if a.startswith("v_exp") and b.startswith("v_cvt"): out.append("s_nop 0")
    pre = {0: ["s_waitcnt lgkmcnt(8)", "s_nop 0"], 12: ["s_waitcnt lgkmcnt(0)"]}
    out += ["s_nop 1"] + mf[48:51] + weave(mf[24:48], {}, pre)
    return out

def c_attn():
    P = stamp("attn start") + half(False, pv=False)
    B = half(True); Ah = half(False)
    E = half(False, qk=False)
    code = P + ["L_a:"] + B + ["s_cbranch_scc1 L_ae"] + Ah + ["s_branch L_a", "L_ae:"] + E
    trace = P + (B + ["s_cbranch_scc1 L_ae"] + Ah + ["s_branch L_a"]) * 7 + B + ["s_cbranch_scc1 L_ae"] + E
    return code, trace

def c_onorm():
    L = []; A = L.append
    L += stamp("attn done")
    for r in range(3): A(f"v_rcp_f32 {v(LS+4*r+1)}, {v(LS+4*r)}")
    A(f"s_lshr_b32 s50, {s(S_W)}, 1")
    A(f"s_and_b32 s51, {s(S_W)}, 1")
    A("s_mul_i32 s52, s50, 24")
    A("s_mul_i32 s53, s51, 3")
    A("s_add_u32 s52, s52, s53")
    A("v_lshlrev_b32 v10, 4, v0")
    A(f"v_add_u32 v11, {OXB}, v10")
    for r in range(3): A(f"v_mov_b32 {v(LS+4*r)}, {v(LS+4*r+1)}")
    for sp in range(4):
        for r in range(3):
            d = 16 + (sp * 3 + r) * 4
            for p in range(2):
                a = oacc(2 * sp + p, r)
                A(f"v_pk_mul_f32 {v(a,2)}, {v(a,2)}, {v(LS+4*r,2)}")
                A(f"v_pk_mul_f32 {v(a+2,2)}, {v(a+2,2)}, {v(LS+4*r,2)}")
            for p in range(2):
                a = oacc(2 * sp + p, r)
                A(cvt(d + 2*p, a, a + 1)); A(cvt(d + 2*p + 1, a + 2, a + 3))
            A(f"s_add_u32 s53, s52, {sp*6+r}")
            A("s_cmp_ge_u32 s53, 40")
            A("s_cselect_b32 s54, 8, 0")
            A("s_add_u32 s53, s53, s54")
            A("s_lshl_b32 s53, s53, 10")
            A("v_add_u32 v12, s53, v11")
            A(f"ds_write_b128 v12, {v(d,4)}")
    A("v_lshrrev_b32 v12, 2, v0")
    A("v_bfe_u32 v13, v0, 3, 2")
    A(f"v_xor_b32 v13, {s(S_W)}, v13")
    A("v_lshlrev_b32 v13, 5, v13")
    A("v_lshl_add_u32 v13, v12, 7, v13")
    A("v_and_b32 v12, 3, v0")
    A("v_lshl_add_u32 v2, v12, 3, v13")
    A(f"v_add_u32 v3, {WOS[0]}, v2")
    A(f"s_mov_b32 {s(S_T0)}, {WOS[0]}")
    A(f"s_mul_i32 {s(S_T1)}, {s(S_W)}, 3072")
    A(f"s_mov_b32 {s(S_CNT)}, 9")
    A("s_waitcnt lgkmcnt(0)")
    A("s_barrier")
    L += stamp("OX")
    for sg in range(3):
        for h in range(2): A(trd(48 + 4*sg + 2*h, 3, sg * 4096 + h * 2048))
    for i in range(48):
        A(rd128(64 + 4*i, 11, oxoff(i)))
        if i % 8 == 7: A("s_waitcnt lgkmcnt(6)")
    A("s_waitcnt lgkmcnt(0)")
    return L

OACC = 16
PK = [40, 44, 12]
def c_oproj():
    def grp(sg): return [mfma(OACC + 4*r, 48 + 4*(sg & 3), 64 + (sg*6 + r)*4, None if sg == 0 else OACC + 4*r) for r in range(6)]
    def rds(sg):
        return [trd(48 + 4*(sg & 3) + 2*h, 3, (sg & 7) * 4096 + h * 2048) for h in range(2)]
    def cv(r): return [cvt(PK[r >> 1] + 2*(r & 1), OACC + 4*r, OACC + 4*r + 1), cvt(PK[r >> 1] + 2*(r & 1) + 1, OACC + 4*r + 2, OACC + 4*r + 3)]
    def st(p): return f"buffer_store_dwordx4 {v(PK[p],4)}, v10, {s(SWS,4)}, {s(S_T1)} offen offset:{p*1024}"
    r3 = rds(3)
    pro = stamp("oproj start") + weave(grp(0), {0: [r3[0]], 1: [r3[1]]})
    body = []
    for sg in range(1, 8):
        rr = rds(sg + 3)
        G = {0: [rr[0]], 1: [rr[1]]}
        pre = {0: ["s_waitcnt lgkmcnt(4)"]}
        if sg == 4:
            G[2] = [f"s_add_u32 {s(S_T0)}, {s(S_T0)}, {32*K1}", f"s_cmp_eq_u32 {s(S_T0)}, {64*K1}"]
            G[3] = [f"s_cselect_b32 {s(S_T0)}, {128*K1}, {s(S_T0)}", f"s_cmp_eq_u32 {s(S_T0)}, {160*K1}"]
            G[4] = [f"s_cselect_b32 {s(S_T0)}, 0, {s(S_T0)}", f"s_sub_u32 {s(S_CNT)}, {s(S_CNT)}, 1"]
            G[5] = [f"v_add_u32 v3, {s(S_T0)}, v2", f"s_cmp_eq_u32 {s(S_CNT)}, 0"]
        if sg == 5:
            G = {2: ["s_waitcnt lgkmcnt(0)", "BARRIER_UNLESS_LAST"], 3: [rr[0]], 4: [rr[1]]}
        if sg in (6, 7): pre = {}
        body += weave(grp(sg), G, pre)
    nxt = weave(grp(0), {0: [r3[0]] + cv(1), 1: [r3[1]] + cv(2), 2: [st(0)] + cv(3), 3: cv(4), 4: [st(1)] + cv(5), 5: [st(2), f"s_add_u32 {s(S_T1)}, {s(S_T1)}, {4*3072}"]},
                {0: ["s_waitcnt lgkmcnt(4)"] + cv(0)})
    tail = ["s_nop 0"] + cv(0) + cv(1) + [st(0)] + cv(2) + cv(3) + [st(1)] + cv(4) + cv(5) + [st(2)]
    def rep(b, last):
        o = []
        for x in b:
            if x == "BARRIER_UNLESS_LAST":
                if last is None: o += ["s_cbranch_scc1 L_onb", "s_barrier", "L_onb:"]
                elif last: o += ["s_cbranch_scc1 L_onb"]
                else: o += ["s_cbranch_scc1 L_onb", "s_barrier"]
            else: o.append(x)
        return o
    code = pro + ["L_o:"] + rep(body, None) + ["s_cbranch_scc1 L_ot"] + nxt + ["s_branch L_o", "L_ot:"] + tail
    trace = pro + (rep(body, False) + ["s_cbranch_scc1 L_ot"] + nxt + ["s_branch L_o"]) * 8 + rep(body, True) + ["s_cbranch_scc1 L_ot"] + tail
    return code, trace

def c_finish():
    L = []
    if OPT["stamps"]:
        L += stamp("end issue")
        L += ["s_waitcnt vmcnt(0)"] + stamp("end")
        L += ["s_waitcnt lgkmcnt(0)",
              "s_add_u32 s56, s18, 0x2000000", "s_addc_u32 s57, s19, 0", "s_mov_b32 s58, 0x20000", "s_mov_b32 s59, 0x20000",
              "s_lshl_b32 s50, s2, 2", f"s_add_u32 s50, s50, {s(S_W)}", "s_lshl_b32 s50, s50, 7", "v_mov_b32 v1, 0"]
        for i in range(2 * nstamp[0]):
            L += [f"v_mov_b32 v2, {s(S_STAMP+i)}", f"buffer_store_dword v2, v1, s[56:59], s50 offen offset:{4*i}"]
    if OPT["stamps"] == 3:
        L += ["s_mov_b32 s56, s16", "s_mov_b32 s57, s17", "s_mov_b32 s58, 256", "s_mov_b64 exec, 1",
              f"s_xor_b32 s50, {s(S_STAMP)}, -1", "v_mov_b32 v2, s50", "buffer_atomic_umax v2, v1, s[56:59], 0 offen"]
        for i in range(nstamp[0]):
            L += [f"v_mov_b32 v3, {s(S_STAMP+2*i)}", f"buffer_atomic_umax v3, v1, s[56:59], 0 offen offset:{4*i+4}", "s_nop 1"]
    L += ["s_endpgm"]
    return L

def dma4(voffs, srd, soff, nt=False):
    if srd in OPT["nodma"]: return []
    return [f"buffer_load_dwordx4 {v(voffs[i])}, {s(srd,4)}, {s(soff)} offen offset:{1024*i}{' nt' if nt else ''} lds" for i in range(4)]

def bar(n): return ["s_barrier"] * n

def l_wq():
    L = []; A = L.append
    A(f"s_sub_u32 s60, {s(S_W)}, 4")
    A("v_lshrrev_b32 v10, 5, v0")
    A("v_bfe_u32 v11, v0, 2, 2")
    A("v_and_b32 v12, 0x13, v0")
    A("v_lshlrev_b32 v12, 4, v12")
    for i in range(4):
        A(f"v_add_u32 v13, {2*i}, v10")
        A("v_and_b32 v14, 3, v13")
        A("v_xor_b32 v14, v14, v11")
        A("v_lshl_add_u32 v14, v14, 6, v12")
        A("v_lshl_add_u32 v14, v13, 13, v14")
        A(f"v_subrev_u32 {v(2+i)}, {1024*i}, v14")
    A("v_lshrrev_b32 v10, 3, v0")
    A("v_mul_u32_u24 v10, 1152, v10")
    A("v_bfe_u32 v11, v0, 1, 2")
    A("v_lshrrev_b32 v12, 4, v0")
    A("v_xor_b32 v11, v11, v12")
    A("v_lshl_add_u32 v10, v11, 5, v10")
    A("v_and_b32 v11, 1, v0")
    A("v_lshl_add_u32 v10, v11, 4, v10")
    for i in range(4): A(f"v_add_u32 {v(6+i)}, {i*(8*1152-1024)}, v10")
    A(f"s_mul_i32 s56, s60, {GOFF[2]}")
    A(f"s_add_u32 s56, s56, {QST}")
    A("s_mov_b32 s61, s56")
    A(f"s_add_u32 s57, s56, {4*WQSLOT}")
    A(f"s_lshl_b32 s62, s60, {4+13}")
    def issue():
        return (["s_mov_b32 m0, s61", f"s_add_u32 s63, s62, {8*8192}"] + dma4([2,3,4,5], SWQ, 62) +
                [f"s_add_u32 m0, s61, {GOFF[1]}", f"s_add_u32 s61, s61, {WQSLOT}"] + dma4([2,3,4,5], SWQ, 63) +
                [f"s_add_u32 s62, s62, {32*8192}", "s_cmp_eq_u32 s61, s57", "s_cselect_b32 s61, s56, s61"])
    pro = L + [f"s_mov_b32 {s(S_CNT)}, 18"]
    body = issue() + [f"s_sub_u32 {s(S_CNT)}, {s(S_CNT)}, 1", f"s_cmp_gt_u32 {s(S_CNT)}, 15"]
    wb = ["s_waitcnt vmcnt(16)", "s_barrier", f"s_cmp_gt_u32 {s(S_CNT)}, 0"]
    mid = ["s_waitcnt vmcnt(8)", "s_barrier", "s_waitcnt vmcnt(0)", "s_barrier", "s_barrier"]
    mid += [f"s_lshl_b32 s56, s60, 14", f"s_mul_i32 s62, s60, {128*1152}", f"s_movk_i32 s58, 0"]
    def wissue(slot_expr):
        o = slot_expr
        for q in range(4):
            o += [f"s_add_u32 m0, s61, {q*4096}", f"s_add_u32 s63, s62, {q*32*1152}"] + dma4([6,7,8,9], SWO, 63)
        o += ["s_add_u32 s62, s62, 128"]
        return o
    def slot_const(k): return [f"s_add_u32 s61, s56, {WOS[k]}"]
    att = bar(8) + wissue(slot_const(0)) + bar(4) + wissue(slot_const(1)) + bar(2) + wissue(slot_const(2)) + bar(2)
    att += ["s_waitcnt vmcnt(32)", "s_barrier", f"s_mov_b32 {s(S_CNT)}, 6", f"s_mov_b32 s58, {WOS[0]}"]
    nextslot = ["s_add_u32 s61, s56, s58", f"s_add_u32 s58, s58, {32*K1}", f"s_cmp_eq_u32 s58, {64*K1}", f"s_cselect_b32 s58, {128*K1}, s58",
                f"s_cmp_eq_u32 s58, {160*K1}", "s_cselect_b32 s58, 0, s58"]
    wbody = ["s_waitcnt vmcnt(16)", "s_barrier"] + wissue(nextslot) + [f"s_sub_u32 {s(S_CNT)}, {s(S_CNT)}, 1", f"s_cmp_gt_u32 {s(S_CNT)}, 0"]
    fin = ["s_waitcnt vmcnt(16)", "s_barrier", "s_waitcnt vmcnt(0)", "s_barrier", "s_endpgm"]
    code = pro + ["L_wq:"] + body + ["s_cbranch_scc1 L_wq"] + wb + ["s_cbranch_scc1 L_wq"] + mid + att + ["L_wo:"] + wbody + ["s_cbranch_scc1 L_wo"] + fin
    trace = pro + (body + ["s_cbranch_scc1 L_wq"]) * 2 + (body + ["s_cbranch_scc1 L_wq"] + wb + ["s_cbranch_scc1 L_wq"]) * 16 + mid + att + (wbody + ["s_cbranch_scc1 L_wo"]) * 6 + fin
    return code, trace

def kv_voffs(kind, base):
    L = []; A = L.append
    A("v_lshrrev_b32 v10, 4, v0")
    A("v_and_b32 v11, 15, v0")
    A("v_lshlrev_b32 v13, 8, v10")
    for i in range(4 if kind == "K" else 2):
        A(f"v_add_u32 v12, {4*i}, v10")
        if kind == "V": A("v_lshlrev_b32 v12, 1, v12")
        A("v_xor_b32 v12, v12, v11")
        A(f"v_lshl_add_u32 {v(base+i)}, v12, 4, v13")
    return L

def kv_tile(kind, vo, st):
    srd = SK if kind == "K" else SV
    regs = [vo, vo+1, vo+2, vo+3] if kind == "K" else [vo, vo+1, vo, vo+1]
    o = [f"s_and_b32 s56, {s(st)}, 7", "s_lshl_b32 s56, s56, 14"]
    if kind == "V": o += ["s_add_u32 s56, s56, 8192"]
    o += [f"s_add_u32 s57, {s(st)}, {s(S_ROT)}", "s_and_b32 s57, s57, 15", "s_mov_b32 m0, s56", "s_lshl_b32 s57, s57, 13"]
    o += dma4(regs, srd, 57, nt=True)
    o += ["s_add_u32 m0, s56, 4096", "s_add_u32 s57, s57, 4096"] + dma4(regs, srd, 57, nt=True)
    o += [f"s_add_u32 {s(st)}, {s(st)}, 1"]
    return o

def l_x():
    L = []; A = L.append
    A("v_lshrrev_b32 v10, 3, v0")
    A("v_mul_u32_u24 v10, 1152, v10")
    A("v_and_b32 v11, 7, v0")
    A("v_lshrrev_b32 v12, 4, v0")
    for i in range(4):
        A(f"v_xor_b32 v13, {4*(i&1)}, v12")
        A("v_xor_b32 v13, v13, v11")
        A("v_lshl_add_u32 v13, v13, 4, v10")
        A(f"v_add_u32 {v(2+i)}, {i*(8*1152-1024)}, v13")
    A(f"s_mov_b32 s61, {XST}")
    A("s_mov_b32 s62, 0")
    def issue():
        o = []
        for q in range(3):
            o += [f"s_add_u32 m0, s61, {q*4096}", f"s_add_u32 s63, s62, {q*32*1152}"] + dma4([2,3,4,5], SX, 63)
        o += ["s_add_u32 s62, s62, 128", f"s_add_u32 s61, s61, {XSLOT}", f"s_cmp_eq_u32 s61, {XST+3*XSLOT}", f"s_cselect_b32 s61, {XST}, s61"]
        return o
    pro = L + [f"s_mov_b32 {s(S_CNT)}, 9"]
    body = issue() + [f"s_sub_u32 {s(S_CNT)}, {s(S_CNT)}, 1", f"s_cmp_gt_u32 {s(S_CNT)}, 6"]
    b0 = [f"s_cmp_lt_u32 {s(S_CNT)}, 6"]
    b0b = ["s_waitcnt vmcnt(24)", "s_barrier"]
    wb = ["s_barrier", "s_waitcnt vmcnt(12)", "s_barrier", f"s_cmp_gt_u32 {s(S_CNT)}, 0"]
    mid = ["s_barrier", "s_waitcnt vmcnt(0)", "s_barrier"] + kv_voffs("V", 6) + ["s_barrier", "s_barrier", "s_mov_b32 s60, 3"]
    vb = kv_tile("V", 6, 60) + ["s_cmp_lt_u32 s60, 6"]
    vw = ["s_waitcnt vmcnt(40)", "s_barrier", "s_cmp_lt_u32 s60, 16"]
    fin = []
    for q in range(12, 17): fin += [f"s_waitcnt vmcnt({8*(15-(q-1))})", "s_barrier"]
    fin += bar(9) + ["s_endpgm"]
    code = (pro + ["L_x:"] + body + ["s_cbranch_scc1 L_x"] + b0 + ["s_cbranch_scc1 L_x1"] + b0b + ["L_x1:"] + wb + ["s_cbranch_scc1 L_x"] + mid +
            ["L_v:"] + vb + ["s_cbranch_scc1 L_v"] + vw + ["s_cbranch_scc1 L_v"] + fin)
    trace = pro + body * 2 + body + b0 + b0b + wb + (body + b0 + wb) * 6 + mid + vb * 2 + (vb + vw) * 11 + fin
    return code, trace

def l_k():
    pro = kv_voffs("K", 2) + kv_voffs("V", 6) + ["s_mov_b32 s60, 0", "s_mov_b32 s61, 0"]
    eb = ["s_barrier"] + kv_tile("K", 2, 60) + ["s_cmp_eq_u32 s60, 4"]
    eb2 = ["s_barrier"] + kv_tile("V", 6, 61)
    mid = bar(11) + ["s_waitcnt vmcnt(0)", "s_barrier"]
    kb = kv_tile("K", 2, 60) + ["s_cmp_lt_u32 s60, 8"]
    kw = ["s_waitcnt vmcnt(48)", "s_barrier", "s_cmp_lt_u32 s60, 16"]
    fin = []
    for q in range(10, 16): fin += [f"s_waitcnt vmcnt({8*(15-q)})", "s_barrier"]
    fin += bar(1 + 9) + ["s_endpgm"]
    code = (pro + ["L_e:"] + eb + ["s_cbranch_scc1 L_e1"] + eb2 + ["s_branch L_e", "L_e1:"] + mid +
            ["L_k:"] + kb + ["s_cbranch_scc1 L_k"] + kw + ["s_cbranch_scc1 L_k"] + fin)
    trace = pro + (eb + eb2) * 3 + eb + mid + kb * 3 + (kb + kw) * 9 + fin
    return code, trace

def reduce_kernel():
    L = []; A = L.append
    A("s_cmp_ge_u32 s2, 27")
    A("s_cbranch_scc1 L_rend")
    A("s_load_dwordx2 s[4:5], s[0:1], 40")
    A("s_load_dwordx2 s[6:7], s[0:1], 56")
    A("v_lshrrev_b32 v1, 6, v0")
    A("v_lshlrev_b32 v2, 4, v0")
    A("s_lshl_b32 s20, s2, 12")
    A("v_readfirstlane_b32 s21, v1")
    A("v_add_u32 v2, s20, v2")
    A(f"s_mul_i32 s22, s3, {16*110592}")
    A("s_mul_i32 s23, s3, 110592")
    A(f"s_mov_b32 s10, {16*110592}"); A("s_mov_b32 s11, 0x20000")
    A("s_mov_b32 s14, 110592"); A("s_mov_b32 s15, 0x20000")
    A("s_waitcnt lgkmcnt(0)")
    A("s_add_u32 s8, s6, s22"); A("s_addc_u32 s9, s7, 0")
    A("s_add_u32 s12, s4, s23"); A("s_addc_u32 s13, s5, 0")
    A("s_mov_b32 s24, 0")
    for j in range(16):
        A(f"buffer_load_dwordx4 {v(16+4*j,4)}, v2, s[8:11], s24 offen")
        if j < 15: A("s_add_u32 s24, s24, 110592")
    A("s_lshl_b32 s20, s2, 2"); A("s_add_u32 s20, s20, s21")
    A("s_mul_i32 s22, s20, 43"); A("s_lshr_b32 s22, s22, 7")
    A("s_mul_i32 s23, s22, 3"); A("s_sub_u32 s23, s20, s23")
    A(f"s_mul_i32 s23, s23, {32*1152}"); A("s_lshl_b32 s22, s22, 5"); A("s_add_u32 s22, s22, s23")
    A(f"s_add_u32 s23, s22, {16*1152}")
    A("v_and_b32 v3, 15, v0"); A("v_mul_u32_u24 v3, 1152, v3")
    A("v_bfe_u32 v4, v0, 4, 2"); A("v_lshl_add_u32 v3, v4, 3, v3")
    A("s_mov_b32 s25, 0xffff0000")
    for j in range(16):
        A(f"s_waitcnt vmcnt({15-j})")
        for i in range(4):
            r = 16 + 4*j + i
            if j == 0:
                A(f"v_lshlrev_b32 {v(8+2*i)}, 16, {v(r)}"); A(f"v_and_b32 {v(9+2*i)}, s25, {v(r)}")
            else:
                A(f"v_lshlrev_b32 v4, 16, {v(r)}"); A(f"v_and_b32 v5, s25, {v(r)}")
                A(f"v_pk_add_f32 {v(8+2*i,2)}, {v(8+2*i,2)}, v[4:5]")
    for i in range(4): A(cvt(4 + i, 8 + 2*i, 9 + 2*i))
    A("buffer_store_dwordx2 v[4:5], v3, s[12:15], s22 offen")
    A("buffer_store_dwordx2 v[6:7], v3, s[12:15], s23 offen")
    A("L_rend:")
    A("s_endpgm")
    return L

def build():
    pro = prologue()
    cs = c_setup(); qc, qt = c_qproj(); qv = c_qcvt(); ac, at = c_attn(); on = c_onorm(); oc, ot = c_oproj(); fi = c_finish()
    wqc, wqt = l_wq(); xc, xt = l_x(); kc, kt = l_k()
    disp = ["L_loaders:", f"s_cmp_eq_u32 {s(S_W)}, 6", "s_cbranch_scc1 L_ldx", f"s_cmp_eq_u32 {s(S_W)}, 7", "s_cbranch_scc1 L_ldk"]
    code = pro + cs + qc + qv + ac + on + oc + fi + disp + wqc + ["L_ldx:"] + xc + ["L_ldk:"] + kc + ["L_end:", "s_endpgm"]
    red = reduce_kernel()
    if OPT["check"]:
        tot = 0; nb = set()
        for nm, tr in (("compute", pro + cs + qt + qv + at + on + ot + fi), ("wq", pro + wqt), ("x", pro + xt), ("k", pro + kt), ("red", red)):
            e, b = chk.check(tr, nm)
            tot += e
            if nm != "red": nb.add(b)
        assert len(nb) == 1, f"barrier mismatch {nb}"
    def fmt(L): return "\n".join(x if x.endswith(":") else "    " + x for x in L)
    def desc(name, vg, y):
        return f""".amdhsa_kernel {name}
  .amdhsa_next_free_vgpr {vg}
  .amdhsa_next_free_sgpr 102
  .amdhsa_accum_offset {vg}
  .amdhsa_group_segment_fixed_size 0
  .amdhsa_kernarg_size 64
  .amdhsa_user_sgpr_count 2
  .amdhsa_user_sgpr_kernarg_segment_ptr 1
  .amdhsa_system_sgpr_workgroup_id_x 1
""" + ("  .amdhsa_system_sgpr_workgroup_id_y 1\n" if y else "") + ".end_amdhsa_kernel\n"
    return f"""; Fused GQA block: Q-proj + attention + O-proj partials per (batch, kv head) workgroup, then a reduce launch.
; @launch kernel={KMAIN} grid=(256,1,1) block=(512,1,1) lds=163840
; @launch kernel={KRED} grid=(27,16,1) block=(256,1,1) lds=0
.amdgcn_target "amdgcn-amd-amdhsa--gfx950"
.text
.globl {KMAIN}
.p2align 8
.type {KMAIN},@function
{KMAIN}:
{fmt(code)}
.globl {KRED}
.p2align 8
.type {KRED},@function
{KRED}:
{fmt(red)}
.section .rodata,"a"
.p2align 6
{desc(KMAIN, 256, False)}.p2align 6
{desc(KRED, 80, True)}"""

if __name__ == "__main__":
    out = sys.argv[1]
    for a in sys.argv[2:]:
        k, val = a.split("=")
        OPT[k] = int(val) if val.lstrip("-").isdigit() else val
    if OPT["nodma"]: OPT["nodma"] = [dict(x=SX, k=SK, v=SV, q=SWQ, o=SWO)[c] for c in OPT["nodma"]]
    open(out, "w").write(build())
```

```python
import sys, struct, math
sys.path.insert(0, "work")
import chk

KMAIN = "standalone__gqa_block_cached__near_ridge_kernel"
KRED = "gqa_reduce_kernel"
OPT = dict(stamps=0, dbg="", rot=1, check=1, nodma=(), wgsel=0, wsoff=0, stf='')

def f2u(x): return struct.unpack("<I", struct.pack("<f", x))[0]
def v(a, n=1): return f"v{a}" if n == 1 else f"v[{a}:{a+n-1}]"
def s(a, n=1): return f"s{a}" if n == 1 else f"s[{a}:{a+n-1}]"
K1 = 1024
QST = 56 * K1
WQSLOT = 16416
GOFF = [0, 4104, 8208, 12312]
XST = QST + 4 * WQSLOT
XSLOT = 12288
assert XST + 3 * XSLOT <= 160 * K1
WOS = [128 * K1, 0, 32 * K1]
OXB = 64 * K1
def oxoff(idx): return idx * K1 + (8 * K1 if idx >= 40 else 0)
SX, SK, SV, SWQ, SWO, SWS = 24, 28, 32, 36, 40, 44
S_W, S_B, S_J, S_ROT = 20, 21, 22, 23
S_CNT, S_D, S_T0, S_T1, S_T2, S_T3, S_T4, S_T5 = 48, 49, 50, 51, 52, 53, 54, 55
S_STAMP = 64
QACC = 16
def qacc(T, r): return QACC + (T * 3 + r) * 4
FB = [112, 156]
def fwq(b, T): return FB[b] + 4 * T
def fx(b, r): return FB[b] + 32 + 4 * r
def qf(sx, r): return 208 + (sx * 3 + r) * 4
POOL = 16
BX, BZ, BY, LS, ONES, KAD, VAD = 48, 60, 72, 84, 96, 100, 104
def oacc(T, r): return 112 + (T * 3 + r) * 4
WQAD = 2
XAD = 6
XADB = 8
def mfma(d, a, b, c):
    cs = "0" if c is None else v(c, 4)
    return f"v_mfma_f32_16x16x32_bf16 {v(d,4)}, {v(a,4)}, {v(b,4)}, {cs}"
def trd(d, ad, off): return f"ds_read_b64_tr_b16 {v(d,2)}, {v(ad)} offset:{off}"
def rd128(d, ad, off): return f"ds_read_b128 {v(d,4)}, {v(ad)} offset:{off}"
def cvt(d, a, b): return f"v_cvt_pk_bf16_f32 {v(d)}, {v(a)}, {v(b)}"

nstamp = [0]
def stamp(name=""):
    if not OPT["stamps"]: return []
    i = nstamp[0]; nstamp[0] += 1
    assert i < 16
    op = "s_memtime" if OPT["stamps"] == 2 else "s_memrealtime"
    return [f"{op} {s(S_STAMP + 2 * i, 2)}  ; stamp {i} {name}"]

def weave(mf, gaps, pre=None):
    out = []
    for i, m in enumerate(mf):
        if pre and i in pre: out += pre[i]
        out.append(m)
        out += gaps.get(i, [])
    return out

def prologue():
    L = []
    A = L.append
    A("s_cmp_ge_u32 s2, 256")
    A("s_cbranch_scc1 L_end")
    A("s_load_dwordx16 s[4:19], s[0:1], 0")
    L += stamp("start")
    A("v_lshrrev_b32 v1, 6, v0")
    A("v_and_b32 v0, 63, v0")
    A("s_and_b32 s50, s2, 7")
    A("s_lshr_b32 s51, s2, 3")
    A(f"v_readfirstlane_b32 {s(S_W)}, v1")
    A("s_and_b32 s52, s50, 3")
    A("s_lshl_b32 s52, s52, 2")
    A("s_and_b32 s53, s51, 3")
    A(f"s_add_u32 {s(S_J)}, s52, s53")
    A("s_lshr_b32 s52, s50, 2")
    A("s_lshl_b32 s52, s52, 3")
    A("s_lshr_b32 s53, s51, 2")
    A(f"s_add_u32 {s(S_B)}, s52, s53")
    if OPT["rot"]:
        A(f"s_lshl_b32 {s(S_ROT)}, s51, 1")
        A(f"s_and_b32 {s(S_ROT)}, {s(S_ROT)}, 15")
    else:
        A(f"s_mov_b32 {s(S_ROT)}, 0")
    A(f"s_lshl_b32 s54, {s(S_B)}, 4")
    A(f"s_add_u32 s54, s54, {s(S_J)}")
    A(f"s_mul_i32 s50, {s(S_B)}, 110592")
    A("s_lshl_b32 s51, s54, 17")
    A(f"s_lshl_b32 s52, {s(S_J)}, 9")
    A(f"s_mul_i32 s53, {s(S_J)}, {256*1152}")
    A("s_mul_i32 s55, s54, 110592")
    if OPT["wsoff"]: A(f"s_add_u32 s55, s55, {OPT['wsoff'] << 20}")
    for srd, nrec in ((SX, 110592), (SK, 131072), (SV, 131072), (SWQ, 575 * 8192 + 512), (SWO, 256 * 1152), (SWS, 110592)):
        A(f"s_mov_b32 {s(srd+2)}, {nrec}")
        A(f"s_mov_b32 {s(srd+3)}, 0x20000")
    A("s_waitcnt lgkmcnt(0)")
    for srd, p, o in ((SX, 4, 50), (SK, 6, 51), (SV, 8, 51), (SWQ, 10, 52), (SWO, 12, 53), (SWS, 18, 55)):
        A(f"s_add_u32 {s(srd)}, {s(p)}, {s(o)}")
        A(f"s_addc_u32 {s(srd+1)}, {s(p+1)}, 0")
    A(f"s_cmp_ge_u32 {s(S_W)}, 4")
    A("s_cbranch_scc1 L_loaders")
    return L

def c_setup():
    L = []; A = L.append
    A("v_and_b32 v10, 15, v0")
    A("v_lshrrev_b32 v11, 4, v0")
    A("v_bfe_u32 v12, v0, 2, 2")
    A("v_and_b32 v13, 3, v0")
    A(f"s_lshr_b32 s50, {s(S_W)}, 1")
    A(f"s_and_b32 s51, {s(S_W)}, 1")
    A("v_mul_u32_u24 v14, 4104, v11")
    A("v_lshl_add_u32 v14, v12, 9, v14")
    A("v_lshl_add_u32 v14, v13, 4, v14")
    A("s_lshl_b32 s52, s50, 8")
    A(f"s_add_u32 s52, s52, {QST}")
    A("v_add_u32 v14, s52, v14")
    for sx in range(4):
        A(f"v_xor_b32 v15, {sx}, v12")
        A(f"v_lshl_add_u32 {v(WQAD+sx)}, v15, 6, v14")
    A("s_mul_i32 s52, s51, 6144")
    A(f"s_add_u32 s52, s52, {XST}")
    A("v_lshlrev_b32 v14, 7, v10")
    A("v_add_u32 v14, s52, v14")
    A("v_lshrrev_b32 v15, 1, v10")
    A("v_xor_b32 v15, v15, v11")
    A(f"v_lshl_add_u32 {v(XADB)}, v15, 4, v14")
    A(f"v_xor_b32 {v(XADB+1)}, 64, {v(XADB)}") if (XST % 128 == 0) else None
    assert XST % 128 == 0
    A(f"v_mov_b32 {v(XAD)}, {v(XADB)}")
    A(f"v_mov_b32 {v(XAD+1)}, {v(XADB+1)}")
    A(f"s_mov_b32 {s(S_D)}, {2*WQSLOT}")
    A(f"s_mov_b32 {s(S_T0)}, 0")
    A(f"s_mov_b32 {s(S_CNT)}, 9")
    return L

def q_reads(buf, wqoff, xad):
    R = []
    for r in range(3): R.append(rd128(fx(buf, r), xad, r * 2048))
    for T in range(8):
        sx, p = T >> 1, T & 1
        for h in range(2):
            R.append(trd(fwq(buf, T) + 2 * h, WQAD + sx, wqoff + h * 2048 + 8 * p))
    return R

def q_mfmas(buf, first=False):
    return [mfma(qacc(T, r), fwq(buf, T), fx(buf, r), None if first else qacc(T, r)) for T in range(8) for r in range(3)]

def q_step(buf, reads, extra=None):
    gaps = {}
    for i, r in enumerate(reads): gaps.setdefault(i, []).append(r)
    if extra:
        for k, x in extra.items(): gaps.setdefault(k, []).extend(x)
    return ["s_waitcnt lgkmcnt(0)", "s_barrier"] + weave(q_mfmas(buf), gaps)

def c_qproj():
    pro = [f"v_mov_b32 {v(QACC+i)}, 0" for i in range(96)]
    pro += ["s_barrier"] + stamp("B0") + q_reads(0, 0, XAD)
    exE = {19: [f"v_add_u32 {v(WQAD)}, {s(S_D)}, {v(WQAD)}", f"v_add_u32 {v(WQAD+1)}, {s(S_D)}, {v(WQAD+1)}"],
           20: [f"v_add_u32 {v(WQAD+2)}, {s(S_D)}, {v(WQAD+2)}", f"v_add_u32 {v(WQAD+3)}, {s(S_D)}, {v(WQAD+3)}"],
           3: [f"s_add_u32 {s(S_T0)}, {s(S_T0)}, {XSLOT}"],
           4: [f"s_cmp_eq_u32 {s(S_T0)}, {3*XSLOT}"],
           5: [f"s_cselect_b32 {s(S_T0)}, 0, {s(S_T0)}"],
           21: [f"v_add_u32 {v(XAD)}, {s(S_T0)}, {v(XADB)}", f"v_add_u32 {v(XAD+1)}, {s(S_T0)}, {v(XADB+1)}"],
           22: [f"s_sub_u32 {s(S_D)}, 0, {s(S_D)}", f"s_sub_u32 {s(S_CNT)}, {s(S_CNT)}, 1"],
           23: [f"s_cmp_eq_u32 {s(S_CNT)}, 0"]}
    E = q_step(0, q_reads(1, WQSLOT, XAD + 1), exE)
    O = q_step(1, q_reads(0, 0, XAD))
    z = [f"v_mov_b32 {v(112+i)}, 0" for i in range(44)]
    P17 = q_step(1, [], {i: z[2*i:2*i+2] for i in range(22)})
    code = pro + ["L_q:"] + E + ["s_cbranch_scc1 L_q17"] + O + ["s_branch L_q", "L_q17:"] + P17
    trace = pro + (E + ["s_cbranch_scc1 L_q17"] + O + ["s_branch L_q"]) * 8 + E + ["s_cbranch_scc1 L_q17"] + P17
    return code, trace

def c_qcvt():
    L = []; A = L.append
    L += stamp("qproj done")
    sc = (128 ** -0.5) * math.log2(math.e)
    A(f"s_mov_b32 s50, 0x{f2u(sc):08x}")
    A("s_mov_b32 s51, s50")
    for i in range(44, 96): A(f"v_mov_b32 {v(112+i)}, 0")
    order = [6, 7, 0, 1, 2, 3, 4, 5]
    def conv(T):
        o = []
        for r in range(3):
            a = qacc(T, r)
            o.append(f"v_pk_mul_f32 {v(a,2)}, {v(a,2)}, s[50:51]")
            o.append(f"v_pk_mul_f32 {v(a+2,2)}, {v(a+2,2)}, s[50:51]")
        for r in range(3):
            a = qacc(T, r); d = qf(T >> 1, r) + 2 * (T & 1)
            o.append(cvt(d, a, a + 1)); o.append(cvt(d + 1, a + 2, a + 3))
        return o
    for T in order[:5]: L += conv(T)
    for sx in range(4):
        A(f"v_xor_b32 v14, {4*sx}, v11")
        A("v_xor_b32 v14, v14, v10")
        A("v_lshlrev_b32 v14, 4, v14")
        A(f"v_lshl_add_u32 {v(KAD+sx)}, v10, 8, v14")
    for f in range(8): A(rd128(POOL + 4 * f, KAD + (f & 3), (f >> 2) * 4096))
    A("v_lshl_add_u32 v14, v11, 2, v12")
    A("v_lshlrev_b32 v15, 8, v14")
    A("v_lshl_add_u32 v15, v13, 3, v15")
    A("v_add_u32 v15, 8192, v15")
    A("v_and_b32 v14, 7, v14")
    for T in range(8):
        A(f"v_xor_b32 v1, {T}, v14")
        A(f"v_lshl_add_u32 {v(VAD+T)}, v1, 5, v15")
    for T in order[5:]: L += conv(T)
    for i in range(12): A(f"v_mov_b32 {v(LS+i)}, 0")
    for i in range(4): A(f"v_mov_b32 {v(ONES+i)}, 0x3f803f80")
    A(f"s_mov_b32 {s(S_D)}, {32*K1}")
    A(f"s_mov_b32 {s(S_CNT)}, 8")
    return L

E0G = [16, 19, 22, 25, 27, 28, 30, 31, 33, 34, 36, 37]
E1G = [39, 40, 42, 43, 45, 46, 48, 49]
E1N = [0, 1, 4, 7]
def ex(r): return f"v_exp_f32 {v(r)}, {v(r)}"

def half(odd, qk=True, pv=True):
    cur = BZ if odd else BX
    prv = BX if odd else BZ
    off = 0 if odd else 16 * K1
    mf = []
    for f in range(8):
        kt, sx = f >> 2, f & 3
        for r in range(3):
            d = (cur if kt == 0 else BY) + 4 * r
            mf.append(mfma(d, POOL + 4 * f, qf(sx, r), None if sx == 0 else d))
    for T in range(8):
        for r in range(3):
            mf.append(mfma(oacc(T, r), POOL + 4 * T, prv + 4 * r, oacc(T, r)))
    for r in range(3): mf.append(mfma(LS + 4 * r, ONES, prv + 4 * r, LS + 4 * r))
    G = {i: [] for i in range(51)}
    if pv:
        for T in range(8):
            G[3*T+2].append(trd(POOL + 4*T, VAD + T, off))
            G[3*T+3].append(trd(POOL + 4*T + 2, VAD + T, off + 4096))
        for i, g in enumerate(E1N): G[g].append(ex(BY + 8 + i))
        G[2].append(cvt(prv + 8 + 2, BY + 8, BY + 9))
        G[8].append(cvt(prv + 8 + 3, BY + 10, BY + 11))
    if qk:
        for f in range(8): G[24 + 3*f + 2].append(rd128(POOL + 4*f, KAD + (f & 3), off + (f >> 2) * 4096))
        for i, g in enumerate(E0G): G[g].append(ex(cur + i))
        for r, (g0, g1) in enumerate([(20, 26), (29, 32), (35, 38)]):
            G[g0].append(cvt(cur + 4*r, cur + 4*r, cur + 4*r + 1))
            G[g1].append(cvt(cur + 4*r + 1, cur + 4*r + 2, cur + 4*r + 3))
        for i, g in enumerate(E1G): G[g].append(ex(BY + i))
        for r, (g0, g1) in enumerate([(41, 44), (47, 50)]):
            G[g0].append(cvt(cur + 4*r + 2, BY + 4*r, BY + 4*r + 1))
            G[g1].append(cvt(cur + 4*r + 3, BY + 4*r + 2, BY + 4*r + 3))
    def xr(r): return f"v_xor_b32 {v(r)}, {s(S_D)}, {v(r)}"
    if qk and pv:
        if odd:
            G[10] += [xr(KAD), xr(KAD + 1)]; G[13] += [xr(KAD + 2), xr(KAD + 3)]
            G[17] += [f"s_sub_u32 {s(S_CNT)}, {s(S_CNT)}, 1"]
            G[50] += [f"s_cmp_eq_u32 {s(S_CNT)}, 0"]
        else:
            G[10] += [xr(VAD), xr(VAD + 1)]; G[13] += [xr(VAD + 2), xr(VAD + 3)]
            G[17] += [xr(VAD + 4)]; G[21] += [xr(VAD + 5)]; G[23] += [xr(VAD + 6)]
            G[50] += [xr(VAD + 7), f"s_xor_b32 {s(S_D)}, {s(S_D)}, {64*K1}"]
    pre = {0: ["s_waitcnt lgkmcnt(4)"], 12: ["s_waitcnt lgkmcnt(7)"], 24: ["s_waitcnt lgkmcnt(7)", "s_barrier"], 36: ["s_waitcnt lgkmcnt(4)"]}
    if qk and pv: return weave(mf, G, pre)
    out = []
    if qk:
        pre = {0: ["s_waitcnt lgkmcnt(4)"], 12: ["s_waitcnt lgkmcnt(0)"]}
        out = weave(mf[:24], G, pre) + ["s_barrier"]
        rest = []
        for g in range(24, 51): rest += G[g]
        out += [x for x in rest if x.startswith("ds_")]
        va = [x for x in rest if not x.startswith("ds_")]
        for a, b in zip(va, va[1:] + [""]):
            out.append(a)
            if a.startswith("v_exp") and b.startswith("v_cvt"): out.append("s_nop 0")
        return out
    out = ["s_waitcnt lgkmcnt(0)"]
    rest = []
    for g in range(0, 25): rest += G[g]
    out += [x for x in rest if x.startswith("ds_")]
    va = [x for x in rest if not x.startswith("ds_")]
    for a, b in zip(va, va[1:] + [""]):
        out.append(a)
        if a.startswith("v_exp") and b.startswith("v_cvt"): out.append("s_nop 0")
    pre = {0: ["s_waitcnt lgkmcnt(8)", "s_nop 0"], 12: ["s_waitcnt lgkmcnt(0)"]}
    out += ["s_nop 1"] + mf[48:51] + weave(mf[24:48], {}, pre)
    return out

def c_attn():
    P = stamp("attn start") + half(False, pv=False)
    B = half(True); Ah = half(False)
    E = half(False, qk=False)
    code = P + ["L_a:"] + B + ["s_cbranch_scc1 L_ae"] + Ah + ["s_branch L_a", "L_ae:"] + E
    trace = P + (B + ["s_cbranch_scc1 L_ae"] + Ah + ["s_branch L_a"]) * 7 + B + ["s_cbranch_scc1 L_ae"] + E
    return code, trace

def c_onorm():
    L = []; A = L.append
    L += stamp("attn done")
    for r in range(3): A(f"v_rcp_f32 {v(LS+4*r+1)}, {v(LS+4*r)}")
    A(f"s_lshr_b32 s50, {s(S_W)}, 1")
    A(f"s_and_b32 s51, {s(S_W)}, 1")
    A("s_mul_i32 s52, s50, 24")
    A("s_mul_i32 s53, s51, 3")
    A("s_add_u32 s52, s52, s53")
    A("v_lshlrev_b32 v10, 4, v0")
    A(f"v_add_u32 v11, {OXB}, v10")
    for r in range(3): A(f"v_mov_b32 {v(LS+4*r)}, {v(LS+4*r+1)}")
    for sp in range(4):
        for r in range(3):
            d = 16 + (sp * 3 + r) * 4
            for p in range(2):
                a = oacc(2 * sp + p, r)
                A(f"v_pk_mul_f32 {v(a,2)}, {v(a,2)}, {v(LS+4*r,2)}")
                A(f"v_pk_mul_f32 {v(a+2,2)}, {v(a+2,2)}, {v(LS+4*r,2)}")
            for p in range(2):
                a = oacc(2 * sp + p, r)
                A(cvt(d + 2*p, a, a + 1)); A(cvt(d + 2*p + 1, a + 2, a + 3))
            A(f"s_add_u32 s53, s52, {sp*6+r}")
            A("s_cmp_ge_u32 s53, 40")
            A("s_cselect_b32 s54, 8, 0")
            A("s_add_u32 s53, s53, s54")
            A("s_lshl_b32 s53, s53, 10")
            A("v_add_u32 v12, s53, v11")
            A(f"ds_write_b128 v12, {v(d,4)}")
    A("v_lshrrev_b32 v12, 2, v0")
    A("v_bfe_u32 v13, v0, 3, 2")
    A(f"v_xor_b32 v13, {s(S_W)}, v13")
    A("v_lshlrev_b32 v13, 5, v13")
    A("v_lshl_add_u32 v13, v12, 7, v13")
    A("v_and_b32 v12, 3, v0")
    A("v_lshl_add_u32 v2, v12, 3, v13")
    A(f"v_add_u32 v3, {WOS[0]}, v2")
    A(f"s_mov_b32 {s(S_T0)}, {WOS[0]}")
    A(f"s_mul_i32 {s(S_T1)}, {s(S_W)}, 3072")
    A(f"s_mov_b32 {s(S_CNT)}, 9")
    A("s_waitcnt lgkmcnt(0)")
    A("s_barrier")
    L += stamp("OX")
    for sg in range(3):
        for h in range(2): A(trd(48 + 4*sg + 2*h, 3, sg * 4096 + h * 2048))
    for i in range(48):
        A(rd128(64 + 4*i, 11, oxoff(i)))
        if i % 8 == 7: A("s_waitcnt lgkmcnt(6)")
    A("s_waitcnt lgkmcnt(0)")
    return L

OACC = 16
PK = [40, 44, 12]
def c_oproj():
    def grp(sg): return [mfma(OACC + 4*r, 48 + 4*(sg & 3), 64 + (sg*6 + r)*4, None if sg == 0 else OACC + 4*r) for r in range(6)]
    def rds(sg):
        return [trd(48 + 4*(sg & 3) + 2*h, 3, (sg & 7) * 4096 + h * 2048) for h in range(2)]
    def cv(r): return [cvt(PK[r >> 1] + 2*(r & 1), OACC + 4*r, OACC + 4*r + 1), cvt(PK[r >> 1] + 2*(r & 1) + 1, OACC + 4*r + 2, OACC + 4*r + 3)]
    def st(p): return f"buffer_store_dwordx4 {v(PK[p],4)}, v10, {s(SWS,4)}, {s(S_T1)} offen offset:{p*1024}{OPT['stf']}"
    r3 = rds(3)
    pro = stamp("oproj start") + weave(grp(0), {0: [r3[0]], 1: [r3[1]]})
    body = []
    for sg in range(1, 8):
        rr = rds(sg + 3)
        G = {0: [rr[0]], 1: [rr[1]]}
        pre = {0: ["s_waitcnt lgkmcnt(4)"]}
        if sg == 4:
            G[2] = [f"s_add_u32 {s(S_T0)}, {s(S_T0)}, {32*K1}", f"s_cmp_eq_u32 {s(S_T0)}, {64*K1}"]
            G[3] = [f"s_cselect_b32 {s(S_T0)}, {128*K1}, {s(S_T0)}", f"s_cmp_eq_u32 {s(S_T0)}, {160*K1}"]
            G[4] = [f"s_cselect_b32 {s(S_T0)}, 0, {s(S_T0)}", f"s_sub_u32 {s(S_CNT)}, {s(S_CNT)}, 1"]
            G[5] = [f"v_add_u32 v3, {s(S_T0)}, v2", f"s_cmp_eq_u32 {s(S_CNT)}, 0"]
        if sg == 5:
            G = {2: ["s_waitcnt lgkmcnt(0)", "BARRIER_UNLESS_LAST"], 3: [rr[0]], 4: [rr[1]]}
        if sg in (6, 7): pre = {}
        body += weave(grp(sg), G, pre)
    nxt = weave(grp(0), {0: [r3[0]] + cv(1), 1: [r3[1]] + cv(2), 2: [st(0)] + cv(3), 3: cv(4), 4: [st(1)] + cv(5), 5: [st(2), f"s_add_u32 {s(S_T1)}, {s(S_T1)}, {4*3072}"]},
                {0: ["s_waitcnt lgkmcnt(4)"] + cv(0)})
    tail = ["s_nop 0"] + cv(0) + cv(1) + [st(0)] + cv(2) + cv(3) + [st(1)] + cv(4) + cv(5) + [st(2)]
    def rep(b, last):
        o = []
        for x in b:
            if x == "BARRIER_UNLESS_LAST":
                if last is None: o += ["s_cbranch_scc1 L_onb", "s_barrier", "L_onb:"]
                elif last: o += ["s_cbranch_scc1 L_onb"]
                else: o += ["s_cbranch_scc1 L_onb", "s_barrier"]
            else: o.append(x)
        return o
    code = pro + ["L_o:"] + rep(body, None) + ["s_cbranch_scc1 L_ot"] + nxt + ["s_branch L_o", "L_ot:"] + tail
    trace = pro + (rep(body, False) + ["s_cbranch_scc1 L_ot"] + nxt + ["s_branch L_o"]) * 8 + rep(body, True) + ["s_cbranch_scc1 L_ot"] + tail
    return code, trace

def c_finish():
    L = []
    if OPT["stamps"]:
        L += stamp("end issue")
        L += ["s_waitcnt vmcnt(0)"] + stamp("end")
        L += ["s_waitcnt lgkmcnt(0)",
              "s_add_u32 s56, s18, 0x2000000", "s_addc_u32 s57, s19, 0", "s_mov_b32 s58, 0x20000", "s_mov_b32 s59, 0x20000",
              "s_lshl_b32 s50, s2, 2", f"s_add_u32 s50, s50, {s(S_W)}", "s_lshl_b32 s50, s50, 7", "v_mov_b32 v1, 0"]
        for i in range(2 * nstamp[0]):
            L += [f"v_mov_b32 v2, {s(S_STAMP+i)}", f"buffer_store_dword v2, v1, s[56:59], s50 offen offset:{4*i}"]
    L += ["s_endpgm"]
    return L

def dma4(voffs, srd, soff, nt=False):
    if srd in OPT["nodma"]: return []
    return [f"buffer_load_dwordx4 {v(voffs[i])}, {s(srd,4)}, {s(soff)} offen offset:{1024*i}{' nt' if nt else ''} lds" for i in range(4)]

def bar(n): return ["s_barrier"] * n

def l_wq():
    L = []; A = L.append
    A(f"s_sub_u32 s60, {s(S_W)}, 4")
    A("v_lshrrev_b32 v10, 5, v0")
    A("v_bfe_u32 v11, v0, 2, 2")
    A("v_and_b32 v12, 0x13, v0")
    A("v_lshlrev_b32 v12, 4, v12")
    for i in range(4):
        A(f"v_add_u32 v13, {2*i}, v10")
        A("v_and_b32 v14, 3, v13")
        A("v_xor_b32 v14, v14, v11")
        A("v_lshl_add_u32 v14, v14, 6, v12")
        A("v_lshl_add_u32 v14, v13, 13, v14")
        A(f"v_subrev_u32 {v(2+i)}, {1024*i}, v14")
    A("v_lshrrev_b32 v10, 3, v0")
    A("v_mul_u32_u24 v10, 1152, v10")
    A("v_bfe_u32 v11, v0, 1, 2")
    A("v_lshrrev_b32 v12, 4, v0")
    A("v_xor_b32 v11, v11, v12")
    A("v_lshl_add_u32 v10, v11, 5, v10")
    A("v_and_b32 v11, 1, v0")
    A("v_lshl_add_u32 v10, v11, 4, v10")
    for i in range(4): A(f"v_add_u32 {v(6+i)}, {i*(8*1152-1024)}, v10")
    A(f"s_mul_i32 s56, s60, {GOFF[2]}")
    A(f"s_add_u32 s56, s56, {QST}")
    A("s_mov_b32 s61, s56")
    A(f"s_add_u32 s57, s56, {4*WQSLOT}")
    A(f"s_lshl_b32 s62, s60, {4+13}")
    def issue():
        return (["s_mov_b32 m0, s61", f"s_add_u32 s63, s62, {8*8192}"] + dma4([2,3,4,5], SWQ, 62) +
                [f"s_add_u32 m0, s61, {GOFF[1]}", f"s_add_u32 s61, s61, {WQSLOT}"] + dma4([2,3,4,5], SWQ, 63) +
                [f"s_add_u32 s62, s62, {32*8192}", "s_cmp_eq_u32 s61, s57", "s_cselect_b32 s61, s56, s61"])
    pro = L + [f"s_mov_b32 {s(S_CNT)}, 18"]
    body = issue() + [f"s_sub_u32 {s(S_CNT)}, {s(S_CNT)}, 1", f"s_cmp_gt_u32 {s(S_CNT)}, 15"]
    wb = ["s_waitcnt vmcnt(16)", "s_barrier", f"s_cmp_gt_u32 {s(S_CNT)}, 0"]
    mid = ["s_waitcnt vmcnt(8)", "s_barrier", "s_waitcnt vmcnt(0)", "s_barrier", "s_barrier"]
    mid += [f"s_lshl_b32 s56, s60, 14", f"s_mul_i32 s62, s60, {128*1152}", f"s_movk_i32 s58, 0"]
    def wissue(slot_expr):
        o = slot_expr
        for q in range(4):
            o += [f"s_add_u32 m0, s61, {q*4096}", f"s_add_u32 s63, s62, {q*32*1152}"] + dma4([6,7,8,9], SWO, 63)
        o += ["s_add_u32 s62, s62, 128"]
        return o
    def slot_const(k): return [f"s_add_u32 s61, s56, {WOS[k]}"]
    att = bar(8) + wissue(slot_const(0)) + bar(4) + wissue(slot_const(1)) + bar(2) + wissue(slot_const(2)) + bar(2)
    att += ["s_waitcnt vmcnt(32)", "s_barrier", f"s_mov_b32 {s(S_CNT)}, 6", f"s_mov_b32 s58, {WOS[0]}"]
    nextslot = ["s_add_u32 s61, s56, s58", f"s_add_u32 s58, s58, {32*K1}", f"s_cmp_eq_u32 s58, {64*K1}", f"s_cselect_b32 s58, {128*K1}, s58",
                f"s_cmp_eq_u32 s58, {160*K1}", "s_cselect_b32 s58, 0, s58"]
    wbody = ["s_waitcnt vmcnt(16)", "s_barrier"] + wissue(nextslot) + [f"s_sub_u32 {s(S_CNT)}, {s(S_CNT)}, 1", f"s_cmp_gt_u32 {s(S_CNT)}, 0"]
    fin = ["s_waitcnt vmcnt(16)", "s_barrier", "s_waitcnt vmcnt(0)", "s_barrier", "s_endpgm"]
    code = pro + ["L_wq:"] + body + ["s_cbranch_scc1 L_wq"] + wb + ["s_cbranch_scc1 L_wq"] + mid + att + ["L_wo:"] + wbody + ["s_cbranch_scc1 L_wo"] + fin
    trace = pro + (body + ["s_cbranch_scc1 L_wq"]) * 2 + (body + ["s_cbranch_scc1 L_wq"] + wb + ["s_cbranch_scc1 L_wq"]) * 16 + mid + att + (wbody + ["s_cbranch_scc1 L_wo"]) * 6 + fin
    return code, trace

def kv_voffs(kind, base):
    L = []; A = L.append
    A("v_lshrrev_b32 v10, 4, v0")
    A("v_and_b32 v11, 15, v0")
    A("v_lshlrev_b32 v13, 8, v10")
    for i in range(4 if kind == "K" else 2):
        A(f"v_add_u32 v12, {4*i}, v10")
        if kind == "V": A("v_lshlrev_b32 v12, 1, v12")
        A("v_xor_b32 v12, v12, v11")
        A(f"v_lshl_add_u32 {v(base+i)}, v12, 4, v13")
    return L

def kv_tile(kind, vo, st):
    srd = SK if kind == "K" else SV
    regs = [vo, vo+1, vo+2, vo+3] if kind == "K" else [vo, vo+1, vo, vo+1]
    o = [f"s_and_b32 s56, {s(st)}, 7", "s_lshl_b32 s56, s56, 14"]
    if kind == "V": o += ["s_add_u32 s56, s56, 8192"]
    o += [f"s_add_u32 s57, {s(st)}, {s(S_ROT)}", "s_and_b32 s57, s57, 15", "s_mov_b32 m0, s56", "s_lshl_b32 s57, s57, 13"]
    o += dma4(regs, srd, 57, nt=True)
    o += ["s_add_u32 m0, s56, 4096", "s_add_u32 s57, s57, 4096"] + dma4(regs, srd, 57, nt=True)
    o += [f"s_add_u32 {s(st)}, {s(st)}, 1"]
    return o

def l_x():
    L = []; A = L.append
    A("v_lshrrev_b32 v10, 3, v0")
    A("v_mul_u32_u24 v10, 1152, v10")
    A("v_and_b32 v11, 7, v0")
    A("v_lshrrev_b32 v12, 4, v0")
    for i in range(4):
        A(f"v_xor_b32 v13, {4*(i&1)}, v12")
        A("v_xor_b32 v13, v13, v11")
        A("v_lshl_add_u32 v13, v13, 4, v10")
        A(f"v_add_u32 {v(2+i)}, {i*(8*1152-1024)}, v13")
    A(f"s_mov_b32 s61, {XST}")
    A("s_mov_b32 s62, 0")
    def issue():
        o = []
        for q in range(3):
            o += [f"s_add_u32 m0, s61, {q*4096}", f"s_add_u32 s63, s62, {q*32*1152}"] + dma4([2,3,4,5], SX, 63)
        o += ["s_add_u32 s62, s62, 128", f"s_add_u32 s61, s61, {XSLOT}", f"s_cmp_eq_u32 s61, {XST+3*XSLOT}", f"s_cselect_b32 s61, {XST}, s61"]
        return o
    pro = L + [f"s_mov_b32 {s(S_CNT)}, 9"]
    body = issue() + [f"s_sub_u32 {s(S_CNT)}, {s(S_CNT)}, 1", f"s_cmp_gt_u32 {s(S_CNT)}, 6"]
    b0 = [f"s_cmp_lt_u32 {s(S_CNT)}, 6"]
    b0b = ["s_waitcnt vmcnt(24)", "s_barrier"]
    wb = ["s_barrier", "s_waitcnt vmcnt(12)", "s_barrier", f"s_cmp_gt_u32 {s(S_CNT)}, 0"]
    mid = ["s_barrier", "s_waitcnt vmcnt(0)", "s_barrier"] + kv_voffs("V", 6) + ["s_barrier", "s_barrier", "s_mov_b32 s60, 3"]
    vb = kv_tile("V", 6, 60) + ["s_cmp_lt_u32 s60, 6"]
    vw = ["s_waitcnt vmcnt(40)", "s_barrier", "s_cmp_lt_u32 s60, 16"]
    fin = []
    for q in range(12, 17): fin += [f"s_waitcnt vmcnt({8*(15-(q-1))})", "s_barrier"]
    fin += bar(9) + ["s_endpgm"]
    code = (pro + ["L_x:"] + body + ["s_cbranch_scc1 L_x"] + b0 + ["s_cbranch_scc1 L_x1"] + b0b + ["L_x1:"] + wb + ["s_cbranch_scc1 L_x"] + mid +
            ["L_v:"] + vb + ["s_cbranch_scc1 L_v"] + vw + ["s_cbranch_scc1 L_v"] + fin)
    trace = pro + body * 2 + body + b0 + b0b + wb + (body + b0 + wb) * 6 + mid + vb * 2 + (vb + vw) * 11 + fin
    return code, trace

def l_k():
    pro = kv_voffs("K", 2) + kv_voffs("V", 6) + ["s_mov_b32 s60, 0", "s_mov_b32 s61, 0"]
    eb = ["s_barrier"] + kv_tile("K", 2, 60) + ["s_cmp_eq_u32 s60, 4"]
    eb2 = ["s_barrier"] + kv_tile("V", 6, 61)
    mid = bar(11) + ["s_waitcnt vmcnt(0)", "s_barrier"]
    kb = kv_tile("K", 2, 60) + ["s_cmp_lt_u32 s60, 8"]
    kw = ["s_waitcnt vmcnt(48)", "s_barrier", "s_cmp_lt_u32 s60, 16"]
    fin = []
    for q in range(10, 16): fin += [f"s_waitcnt vmcnt({8*(15-q)})", "s_barrier"]
    fin += bar(1 + 9) + ["s_endpgm"]
    code = (pro + ["L_e:"] + eb + ["s_cbranch_scc1 L_e1"] + eb2 + ["s_branch L_e", "L_e1:"] + mid +
            ["L_k:"] + kb + ["s_cbranch_scc1 L_k"] + kw + ["s_cbranch_scc1 L_k"] + fin)
    trace = pro + (eb + eb2) * 3 + eb + mid + kb * 3 + (kb + kw) * 9 + fin
    return code, trace

def reduce_kernel():
    L = []; A = L.append
    A("s_cmp_ge_u32 s2, 27")
    A("s_cbranch_scc1 L_rend")
    if OPT["stamps"] == 3: A("s_memrealtime s[30:31]")
    A("s_load_dwordx2 s[4:5], s[0:1], 40")
    A("s_load_dwordx2 s[6:7], s[0:1], 56")
    A("v_lshrrev_b32 v1, 6, v0")
    A("v_lshlrev_b32 v2, 4, v0")
    A("s_lshl_b32 s20, s2, 12")
    A("v_readfirstlane_b32 s21, v1")
    A("v_add_u32 v2, s20, v2")
    A(f"s_mul_i32 s22, s3, {16*110592}")
    A("s_mul_i32 s23, s3, 110592")
    if OPT["wsoff"]: A(f"s_add_u32 s22, s22, {OPT['wsoff'] << 20}")
    A(f"s_mov_b32 s10, {16*110592}"); A("s_mov_b32 s11, 0x20000")
    A("s_mov_b32 s14, 110592"); A("s_mov_b32 s15, 0x20000")
    A("s_waitcnt lgkmcnt(0)")
    A("s_add_u32 s8, s6, s22"); A("s_addc_u32 s9, s7, 0")
    A("s_add_u32 s12, s4, s23"); A("s_addc_u32 s13, s5, 0")
    A("s_mov_b32 s24, 0")
    for j in range(16):
        A(f"buffer_load_dwordx4 {v(16+4*j,4)}, v2, s[8:11], s24 offen")
        if j < 15: A("s_add_u32 s24, s24, 110592")
    A("s_lshl_b32 s20, s2, 2"); A("s_add_u32 s20, s20, s21")
    A("s_mul_i32 s22, s20, 43"); A("s_lshr_b32 s22, s22, 7")
    A("s_mul_i32 s23, s22, 3"); A("s_sub_u32 s23, s20, s23")
    A(f"s_mul_i32 s23, s23, {32*1152}"); A("s_lshl_b32 s22, s22, 5"); A("s_add_u32 s22, s22, s23")
    A(f"s_add_u32 s23, s22, {16*1152}")
    A("v_and_b32 v3, 15, v0"); A("v_mul_u32_u24 v3, 1152, v3")
    A("v_bfe_u32 v4, v0, 4, 2"); A("v_lshl_add_u32 v3, v4, 3, v3")
    A("s_mov_b32 s25, 0xffff0000")
    for j in range(16):
        A(f"s_waitcnt vmcnt({15-j})")
        for i in range(4):
            r = 16 + 4*j + i
            if j == 0:
                A(f"v_lshlrev_b32 {v(8+2*i)}, 16, {v(r)}"); A(f"v_and_b32 {v(9+2*i)}, s25, {v(r)}")
            else:
                A(f"v_lshlrev_b32 v4, 16, {v(r)}"); A(f"v_and_b32 v5, s25, {v(r)}")
                A(f"v_pk_add_f32 {v(8+2*i,2)}, {v(8+2*i,2)}, v[4:5]")
    for i in range(4): A(cvt(4 + i, 8 + 2*i, 9 + 2*i))
    A("buffer_store_dwordx2 v[4:5], v3, s[12:15], s22 offen")
    A("buffer_store_dwordx2 v[6:7], v3, s[12:15], s23 offen")
    if OPT["stamps"] == 3:
        L += ["s_waitcnt vmcnt(0)", "s_memrealtime s[32:33]", "s_load_dwordx2 s[40:41], s[0:1], 48",
              "s_or_b32 s20, s2, s3", "s_or_b32 s20, s20, s21", "s_cmp_eq_u32 s20, 0", "s_cbranch_scc0 L_rend",
              "s_add_u32 s36, s6, 0x2000000", "s_addc_u32 s37, s7, 0", "s_mov_b32 s38, 0x20000", "s_mov_b32 s39, 0x20000",
              "s_mov_b32 s42, 64", "s_mov_b32 s43, 0x20000",
              "v_lshlrev_b32 v1, 3, v0", "v_lshlrev_b32 v2, 2, v0", f"s_mov_b32 s20, {OPT['wgsel']*512}",
              "buffer_load_dword v3, v1, s[36:39], s20 offen", "s_waitcnt vmcnt(0) lgkmcnt(0)",
              "v_writelane_b32 v3, s30, 14", "v_writelane_b32 v3, s32, 15",
              "v_readfirstlane_b32 s20, v3", "s_nop 4", "v_subrev_u32 v3, s20, v3",
              "buffer_store_dword v3, v2, s[40:43], 0 offen"]
    A("L_rend:")
    A("s_endpgm")
    return L

def build():
    pro = prologue()
    cs = c_setup(); qc, qt = c_qproj(); qv = c_qcvt(); ac, at = c_attn(); on = c_onorm(); oc, ot = c_oproj(); fi = c_finish()
    wqc, wqt = l_wq(); xc, xt = l_x(); kc, kt = l_k()
    disp = ["L_loaders:", f"s_cmp_eq_u32 {s(S_W)}, 6", "s_cbranch_scc1 L_ldx", f"s_cmp_eq_u32 {s(S_W)}, 7", "s_cbranch_scc1 L_ldk"]
    code = pro + cs + qc + qv + ac + on + oc + fi + disp + wqc + ["L_ldx:"] + xc + ["L_ldk:"] + kc + ["L_end:", "s_endpgm"]
    red = reduce_kernel()
    if OPT["check"]:
        tot = 0; nb = set()
        for nm, tr in (("compute", pro + cs + qt + qv + at + on + ot + fi), ("wq", pro + wqt), ("x", pro + xt), ("k", pro + kt), ("red", red)):
            e, b = chk.check(tr, nm)
            tot += e
            if nm != "red": nb.add(b)
        assert len(nb) == 1, f"barrier mismatch {nb}"
    def fmt(L): return "\n".join(x if x.endswith(":") else "    " + x for x in L)
    def desc(name, vg, y):
        return f""".amdhsa_kernel {name}
  .amdhsa_next_free_vgpr {vg}
  .amdhsa_next_free_sgpr 102
  .amdhsa_accum_offset {vg}
  .amdhsa_group_segment_fixed_size 0
  .amdhsa_kernarg_size 64
  .amdhsa_user_sgpr_count 2
  .amdhsa_user_sgpr_kernarg_segment_ptr 1
  .amdhsa_system_sgpr_workgroup_id_x 1
""" + ("  .amdhsa_system_sgpr_workgroup_id_y 1\n" if y else "") + ".end_amdhsa_kernel\n"
    return f"""; Fused GQA block: Q-proj + attention + O-proj partials per (batch, kv head) workgroup, then a reduce launch.
; @launch kernel={KMAIN} grid=(256,1,1) block=(512,1,1) lds=163840
; @launch kernel={KRED} grid=(27,16,1) block=(256,1,1) lds=0
.amdgcn_target "amdgcn-amd-amdhsa--gfx950"
.text
.globl {KMAIN}
.p2align 8
.type {KMAIN},@function
{KMAIN}:
{fmt(code)}
.globl {KRED}
.p2align 8
.type {KRED},@function
{KRED}:
{fmt(red)}
.section .rodata,"a"
.p2align 6
{desc(KMAIN, 256, False)}.p2align 6
{desc(KRED, 80, True)}"""

if __name__ == "__main__":
    out = sys.argv[1]
    for a in sys.argv[2:]:
        k, val = a.split("=")
        OPT[k] = int(val) if val.lstrip("-").isdigit() else val
    OPT["stf"] = OPT["stf"].replace("_", " ")
    if OPT["nodma"]: OPT["nodma"] = [dict(x=SX, k=SK, v=SV, q=SWQ, o=SWO)[c] for c in OPT["nodma"]]
    open(out, "w").write(build())
```

```python
import sys, struct, math
sys.path.insert(0, "work")
import chk

KMAIN = "standalone__gqa_block_cached__near_ridge_kernel"
KRED = "gqa_reduce_kernel"
OPT = dict(stamps=0, dbg="", rot=1, check=1, nodma=(), wgsel=0, fine=0, coop=1, ekv='14.15.15.16.16.17.17', wop='8.10.12', wod='14.16.17', kvw=4, tlb=1, ntt=0, ts='', ntd='', ntr=0, wsoff=0, stf='')

def f2u(x): return struct.unpack("<I", struct.pack("<f", x))[0]
def v(a, n=1): return f"v{a}" if n == 1 else f"v[{a}:{a+n-1}]"
def s(a, n=1): return f"s{a}" if n == 1 else f"s[{a}:{a+n-1}]"
K1 = 1024
QST = 56 * K1
WQSLOT = 16416
GOFF = [0, 4104, 8208, 12312]
XST = QST + 4 * WQSLOT
XSLOT = 12288
assert XST + 3 * XSLOT <= 160 * K1
WOS = [128 * K1, 0, 32 * K1]
OXB = 64 * K1
def oxoff(idx): return idx * K1 + (8 * K1 if idx >= 40 else 0)
SX, SK, SV, SWQ, SWO, SWS = 24, 28, 32, 36, 40, 44
S_W, S_B, S_J, S_ROT = 20, 21, 22, 23
S_CNT, S_D, S_T0, S_T1, S_T2, S_T3, S_T4, S_T5 = 48, 49, 50, 51, 52, 53, 54, 55
S_STAMP = 64
QACC = 16
def qacc(T, r): return QACC + (T * 3 + r) * 4
FB = [112, 156]
def fwq(b, T): return FB[b] + 4 * T
def fx(b, r): return FB[b] + 32 + 4 * r
def qf(sx, r): return 208 + (sx * 3 + r) * 4
POOL = 16
BX, BZ, BY, LS, ONES, KAD, VAD = 48, 60, 72, 84, 96, 100, 104
def oacc(T, r): return 112 + (T * 3 + r) * 4
WQAD = 2
XAD = 6
XADB = 8
def mfma(d, a, b, c):
    cs = "0" if c is None else v(c, 4)
    return f"v_mfma_f32_16x16x32_bf16 {v(d,4)}, {v(a,4)}, {v(b,4)}, {cs}"
def trd(d, ad, off): return f"ds_read_b64_tr_b16 {v(d,2)}, {v(ad)} offset:{off}"
def rd128(d, ad, off): return f"ds_read_b128 {v(d,4)}, {v(ad)} offset:{off}"
def cvt(d, a, b): return f"v_cvt_pk_bf16_f32 {v(d)}, {v(a)}, {v(b)}"

def stamp(name="", first=False, fine=False):
    if not OPT["stamps"] or (fine and not OPT["fine"]): return []
    op = "s_memtime" if OPT["stamps"] == 2 else "s_memrealtime"
    pre = ["s_mov_b32 m0, 0"] if first else ["v_writelane_b32 v1, s96, m0", "s_add_u32 m0, m0, 1"]
    return pre + [f"{op} s[96:97]  ; stamp {name}"]

def weave(mf, gaps, pre=None):
    out = []
    for i, m in enumerate(mf):
        if pre and i in pre: out += pre[i]
        out.append(m)
        out += gaps.get(i, [])
    return out

def prologue():
    L = []
    A = L.append
    A("s_cmp_ge_u32 s2, 256")
    A("s_cbranch_scc1 L_end")
    A("s_load_dwordx16 s[4:19], s[0:1], 0")
    L += stamp("start", first=True)
    A("v_lshrrev_b32 v2, 6, v0")
    A("v_and_b32 v0, 63, v0")
    A("s_and_b32 s50, s2, 7")
    A("s_lshr_b32 s51, s2, 3")
    A(f"v_readfirstlane_b32 {s(S_W)}, v2")
    A("s_and_b32 s52, s50, 3")
    A("s_lshl_b32 s52, s52, 2")
    A("s_and_b32 s53, s51, 3")
    A(f"s_add_u32 {s(S_J)}, s52, s53")
    A("s_lshr_b32 s52, s50, 2")
    A("s_lshl_b32 s52, s52, 3")
    A("s_lshr_b32 s53, s51, 2")
    A(f"s_add_u32 {s(S_B)}, s52, s53")
    if OPT["rot"]:
        A(f"s_lshl_b32 {s(S_ROT)}, s51, 1")
        A(f"s_and_b32 {s(S_ROT)}, {s(S_ROT)}, 15")
    else:
        A(f"s_mov_b32 {s(S_ROT)}, 0")
    A(f"s_lshl_b32 s54, {s(S_B)}, 4")
    A(f"s_add_u32 s54, s54, {s(S_J)}")
    A(f"s_mul_i32 s50, {s(S_B)}, 110592")
    A("s_lshl_b32 s51, s54, 17")
    A(f"s_lshl_b32 s52, {s(S_J)}, 9")
    A(f"s_mul_i32 s53, {s(S_J)}, {256*1152}")
    A("s_mul_i32 s55, s54, 110592")
    if OPT["wsoff"]: A(f"s_add_u32 s55, s55, {OPT['wsoff'] << 20}")
    for srd, nrec in ((SX, 110592), (SK, 131072), (SV, 131072), (SWQ, 575 * 8192 + 512), (SWO, 256 * 1152), (SWS, 110592)):
        A(f"s_mov_b32 {s(srd+2)}, {nrec}")
        A(f"s_mov_b32 {s(srd+3)}, 0x20000")
    A("s_waitcnt lgkmcnt(0)")
    for srd, p, o in ((SX, 4, 50), (SK, 6, 51), (SV, 8, 51), (SWQ, 10, 52), (SWO, 12, 53), (SWS, 18, 55)):
        A(f"s_add_u32 {s(srd)}, {s(p)}, {s(o)}")
        A(f"s_addc_u32 {s(srd+1)}, {s(p+1)}, 0")
    A(f"s_cmp_ge_u32 {s(S_W)}, 4")
    A("s_cbranch_scc1 L_loaders")
    return L

def c_setup():
    L = []; A = L.append
    A("v_and_b32 v10, 15, v0")
    A("v_lshrrev_b32 v11, 4, v0")
    A("v_bfe_u32 v12, v0, 2, 2")
    A("v_and_b32 v13, 3, v0")
    A(f"s_lshr_b32 s50, {s(S_W)}, 1")
    A(f"s_and_b32 s51, {s(S_W)}, 1")
    A("v_mul_u32_u24 v14, 4104, v11")
    A("v_lshl_add_u32 v14, v12, 9, v14")
    A("v_lshl_add_u32 v14, v13, 4, v14")
    A("s_lshl_b32 s52, s50, 8")
    A(f"s_add_u32 s52, s52, {QST}")
    A("v_add_u32 v14, s52, v14")
    for sx in range(4):
        A(f"v_xor_b32 v15, {sx}, v12")
        A(f"v_lshl_add_u32 {v(WQAD+sx)}, v15, 6, v14")
    A("s_mul_i32 s52, s51, 6144")
    A(f"s_add_u32 s52, s52, {XST}")
    A("v_lshlrev_b32 v14, 7, v10")
    A("v_add_u32 v14, s52, v14")
    A("v_lshrrev_b32 v15, 1, v10")
    A("v_xor_b32 v15, v15, v11")
    A(f"v_lshl_add_u32 {v(XADB)}, v15, 4, v14")
    A(f"v_xor_b32 {v(XADB+1)}, 64, {v(XADB)}") if (XST % 128 == 0) else None
    assert XST % 128 == 0
    A(f"v_mov_b32 {v(XAD)}, {v(XADB)}")
    A(f"v_mov_b32 {v(XAD+1)}, {v(XADB+1)}")
    A(f"s_mov_b32 {s(S_D)}, {2*WQSLOT}")
    A(f"s_mov_b32 {s(S_T0)}, 0")
    A(f"s_mov_b32 {s(S_CNT)}, 9")
    return L

def q_reads(buf, wqoff, xad):
    R = []
    for r in range(3): R.append(rd128(fx(buf, r), xad, r * 2048))
    for T in range(8):
        sx, p = T >> 1, T & 1
        for h in range(2):
            R.append(trd(fwq(buf, T) + 2 * h, WQAD + sx, wqoff + h * 2048 + 8 * p))
    return R

def q_mfmas(buf, first=False):
    return [mfma(qacc(T, r), fwq(buf, T), fx(buf, r), None if first else qacc(T, r)) for T in range(8) for r in range(3)]

def q_step(buf, reads, extra=None):
    gaps = {}
    for i, r in enumerate(reads): gaps.setdefault(i, []).append(r)
    if extra:
        for k, x in extra.items(): gaps.setdefault(k, []).extend(x)
    return ["s_waitcnt lgkmcnt(0)", "s_barrier"] + weave(q_mfmas(buf), gaps)

def c_qproj():
    pro = [f"v_mov_b32 {v(QACC+i)}, 0" for i in range(96)]
    pro += ["s_barrier"] + stamp("B0") + q_reads(0, 0, XAD)
    exE = {19: [f"v_add_u32 {v(WQAD)}, {s(S_D)}, {v(WQAD)}", f"v_add_u32 {v(WQAD+1)}, {s(S_D)}, {v(WQAD+1)}"],
           20: [f"v_add_u32 {v(WQAD+2)}, {s(S_D)}, {v(WQAD+2)}", f"v_add_u32 {v(WQAD+3)}, {s(S_D)}, {v(WQAD+3)}"],
           3: [f"s_add_u32 {s(S_T0)}, {s(S_T0)}, {XSLOT}"],
           4: [f"s_cmp_eq_u32 {s(S_T0)}, {3*XSLOT}"],
           5: [f"s_cselect_b32 {s(S_T0)}, 0, {s(S_T0)}"],
           21: [f"v_add_u32 {v(XAD)}, {s(S_T0)}, {v(XADB)}", f"v_add_u32 {v(XAD+1)}, {s(S_T0)}, {v(XADB+1)}"],
           22: [f"s_sub_u32 {s(S_D)}, 0, {s(S_D)}", f"s_sub_u32 {s(S_CNT)}, {s(S_CNT)}, 1"],
           23: [f"s_cmp_eq_u32 {s(S_CNT)}, 0"]}
    E = q_step(0, q_reads(1, WQSLOT, XAD + 1), exE)
    E = E[:2] + stamp("q", fine=True) + E[2:]
    O = q_step(1, q_reads(0, 0, XAD))
    z = [f"v_mov_b32 {v(112+i)}, 0" for i in range(44)]
    P17 = q_step(1, [], {i: z[2*i:2*i+2] for i in range(22)})
    code = pro + ["L_q:"] + E + ["s_cbranch_scc1 L_q17"] + O + ["s_branch L_q", "L_q17:"] + P17
    trace = pro + (E + ["s_cbranch_scc1 L_q17"] + O + ["s_branch L_q"]) * 8 + E + ["s_cbranch_scc1 L_q17"] + P17
    return code, trace

def c_qcvt():
    L = []; A = L.append
    L += stamp("qproj done")
    sc = (128 ** -0.5) * math.log2(math.e)
    A(f"s_mov_b32 s50, 0x{f2u(sc):08x}")
    A("s_mov_b32 s51, s50")
    for i in range(44, 96): A(f"v_mov_b32 {v(112+i)}, 0")
    order = [6, 7, 0, 1, 2, 3, 4, 5]
    def conv(T):
        o = []
        for r in range(3):
            a = qacc(T, r)
            o.append(f"v_pk_mul_f32 {v(a,2)}, {v(a,2)}, s[50:51]")
            o.append(f"v_pk_mul_f32 {v(a+2,2)}, {v(a+2,2)}, s[50:51]")
        for r in range(3):
            a = qacc(T, r); d = qf(T >> 1, r) + 2 * (T & 1)
            o.append(cvt(d, a, a + 1)); o.append(cvt(d + 1, a + 2, a + 3))
        return o
    for T in order[:5]: L += conv(T)
    for sx in range(4):
        A(f"v_xor_b32 v14, {4*sx}, v11")
        A("v_xor_b32 v14, v14, v10")
        A("v_lshlrev_b32 v14, 4, v14")
        A(f"v_lshl_add_u32 {v(KAD+sx)}, v10, 8, v14")
    for f in range(8): A(rd128(POOL + 4 * f, KAD + (f & 3), (f >> 2) * 4096))
    A("v_lshl_add_u32 v14, v11, 2, v12")
    A("v_lshlrev_b32 v15, 8, v14")
    A("v_lshl_add_u32 v15, v13, 3, v15")
    A("v_add_u32 v15, 8192, v15")
    A("v_and_b32 v14, 7, v14")
    for T in range(8):
        A(f"v_xor_b32 v9, {T}, v14")
        A(f"v_lshl_add_u32 {v(VAD+T)}, v9, 5, v15")
    for T in order[5:]: L += conv(T)
    for i in range(12): A(f"v_mov_b32 {v(LS+i)}, 0")
    for i in range(4): A(f"v_mov_b32 {v(ONES+i)}, 0x3f803f80")
    A(f"s_mov_b32 {s(S_D)}, {32*K1}")
    A(f"s_mov_b32 {s(S_CNT)}, 8")
    return L

E0G = [16, 19, 22, 25, 27, 28, 30, 31, 33, 34, 36, 37]
E1G = [39, 40, 42, 43, 45, 46, 48, 49]
E1N = [0, 1, 4, 7]
def ex(r): return f"v_exp_f32 {v(r)}, {v(r)}"

def half(odd, qk=True, pv=True):
    cur = BZ if odd else BX
    prv = BX if odd else BZ
    off = 0 if odd else 16 * K1
    mf = []
    for f in range(8):
        kt, sx = f >> 2, f & 3
        for r in range(3):
            d = (cur if kt == 0 else BY) + 4 * r
            mf.append(mfma(d, POOL + 4 * f, qf(sx, r), None if sx == 0 else d))
    for T in range(8):
        for r in range(3):
            mf.append(mfma(oacc(T, r), POOL + 4 * T, prv + 4 * r, oacc(T, r)))
    for r in range(3): mf.append(mfma(LS + 4 * r, ONES, prv + 4 * r, LS + 4 * r))
    G = {i: [] for i in range(51)}
    if pv:
        for T in range(8):
            G[3*T+2].append(trd(POOL + 4*T, VAD + T, off))
            G[3*T+3].append(trd(POOL + 4*T + 2, VAD + T, off + 4096))
        for i, g in enumerate(E1N): G[g].append(ex(BY + 8 + i))
        G[2].append(cvt(prv + 8 + 2, BY + 8, BY + 9))
        G[8].append(cvt(prv + 8 + 3, BY + 10, BY + 11))
    if qk:
        for f in range(8): G[24 + 3*f + 2].append(rd128(POOL + 4*f, KAD + (f & 3), off + (f >> 2) * 4096))
        for i, g in enumerate(E0G): G[g].append(ex(cur + i))
        for r, (g0, g1) in enumerate([(20, 26), (29, 32), (35, 38)]):
            G[g0].append(cvt(cur + 4*r, cur + 4*r, cur + 4*r + 1))
            G[g1].append(cvt(cur + 4*r + 1, cur + 4*r + 2, cur + 4*r + 3))
        for i, g in enumerate(E1G): G[g].append(ex(BY + i))
        for r, (g0, g1) in enumerate([(41, 44), (47, 50)]):
            G[g0].append(cvt(cur + 4*r + 2, BY + 4*r, BY + 4*r + 1))
            G[g1].append(cvt(cur + 4*r + 3, BY + 4*r + 2, BY + 4*r + 3))
    def xr(r): return f"v_xor_b32 {v(r)}, {s(S_D)}, {v(r)}"
    if qk and pv:
        if odd:
            G[10] += [xr(KAD), xr(KAD + 1)]; G[13] += [xr(KAD + 2), xr(KAD + 3)]
            G[17] += [f"s_sub_u32 {s(S_CNT)}, {s(S_CNT)}, 1"]
            G[50] += [f"s_cmp_eq_u32 {s(S_CNT)}, 0"]
        else:
            G[10] += [xr(VAD), xr(VAD + 1)]; G[13] += [xr(VAD + 2), xr(VAD + 3)]
            G[17] += [xr(VAD + 4)]; G[21] += [xr(VAD + 5)]; G[23] += [xr(VAD + 6)]
            G[50] += [xr(VAD + 7), f"s_xor_b32 {s(S_D)}, {s(S_D)}, {64*K1}"]
    pre = {0: ["s_waitcnt lgkmcnt(4)"], 12: ["s_waitcnt lgkmcnt(7)"], 24: ["s_waitcnt lgkmcnt(7)", "s_barrier"], 36: ["s_waitcnt lgkmcnt(4)"]}
    if qk and pv: return weave(mf, G, pre)
    out = []
    if qk:
        pre = {0: ["s_waitcnt lgkmcnt(4)"], 12: ["s_waitcnt lgkmcnt(0)"]}
        out = weave(mf[:24], G, pre) + ["s_barrier"]
        rest = []
        for g in range(24, 51): rest += G[g]
        out += [x for x in rest if x.startswith("ds_")]
        va = [x for x in rest if not x.startswith("ds_")]
        for a, b in zip(va, va[1:] + [""]):
            out.append(a)
            if a.startswith("v_exp") and b.startswith("v_cvt"): out.append("s_nop 0")
        return out
    out = ["s_waitcnt lgkmcnt(0)"]
    rest = []
    for g in range(0, 25): rest += G[g]
    out += [x for x in rest if x.startswith("ds_")]
    va = [x for x in rest if not x.startswith("ds_")]
    for a, b in zip(va, va[1:] + [""]):
        out.append(a)
        if a.startswith("v_exp") and b.startswith("v_cvt"): out.append("s_nop 0")
    pre = {0: ["s_waitcnt lgkmcnt(8)", "s_nop 0"], 12: ["s_waitcnt lgkmcnt(0)"]}
    out += ["s_nop 1"] + mf[48:51] + weave(mf[24:48], {}, pre)
    return out

def c_attn():
    P = stamp("attn start") + half(False, pv=False)
    B = stamp("a", fine=True) + half(True); Ah = half(False)
    E = half(False, qk=False)
    code = P + ["L_a:"] + B + ["s_cbranch_scc1 L_ae"] + Ah + ["s_branch L_a", "L_ae:"] + E
    trace = P + (B + ["s_cbranch_scc1 L_ae"] + Ah + ["s_branch L_a"]) * 7 + B + ["s_cbranch_scc1 L_ae"] + E
    return code, trace

def c_onorm():
    L = []; A = L.append
    L += stamp("attn done")
    for r in range(3): A(f"v_rcp_f32 {v(LS+4*r+1)}, {v(LS+4*r)}")
    A(f"s_lshr_b32 s50, {s(S_W)}, 1")
    A(f"s_and_b32 s51, {s(S_W)}, 1")
    A("s_mul_i32 s52, s50, 24")
    A("s_mul_i32 s53, s51, 3")
    A("s_add_u32 s52, s52, s53")
    A("v_lshlrev_b32 v10, 4, v0")
    A(f"v_add_u32 v11, {OXB}, v10")
    for r in range(3): A(f"v_mov_b32 {v(LS+4*r)}, {v(LS+4*r+1)}")
    for sp in range(4):
        for r in range(3):
            d = 16 + (sp * 3 + r) * 4
            for p in range(2):
                a = oacc(2 * sp + p, r)
                A(f"v_pk_mul_f32 {v(a,2)}, {v(a,2)}, {v(LS+4*r,2)}")
                A(f"v_pk_mul_f32 {v(a+2,2)}, {v(a+2,2)}, {v(LS+4*r,2)}")
            for p in range(2):
                a = oacc(2 * sp + p, r)
                A(cvt(d + 2*p, a, a + 1)); A(cvt(d + 2*p + 1, a + 2, a + 3))
            A(f"s_add_u32 s53, s52, {sp*6+r}")
            A("s_cmp_ge_u32 s53, 40")
            A("s_cselect_b32 s54, 8, 0")
            A("s_add_u32 s53, s53, s54")
            A("s_lshl_b32 s53, s53, 10")
            A("v_add_u32 v12, s53, v11")
            A(f"ds_write_b128 v12, {v(d,4)}")
    A("v_lshrrev_b32 v12, 2, v0")
    A("v_bfe_u32 v13, v0, 3, 2")
    A(f"v_xor_b32 v13, {s(S_W)}, v13")
    A("v_lshlrev_b32 v13, 5, v13")
    A("v_lshl_add_u32 v13, v12, 7, v13")
    A("v_and_b32 v12, 3, v0")
    A("v_lshl_add_u32 v2, v12, 3, v13")
    A(f"v_add_u32 v3, {WOS[0]}, v2")
    A(f"s_mov_b32 {s(S_T0)}, {WOS[0]}")
    A(f"s_mul_i32 {s(S_T1)}, {s(S_W)}, 3072")
    A(f"s_mov_b32 {s(S_CNT)}, 9")
    A("s_waitcnt lgkmcnt(0)")
    A("s_barrier")
    L += stamp("OX")
    for sg in range(3):
        for h in range(2): A(trd(48 + 4*sg + 2*h, 3, sg * 4096 + h * 2048))
    for i in range(48):
        A(rd128(64 + 4*i, 11, oxoff(i)))
        if i % 8 == 7: A("s_waitcnt lgkmcnt(6)")
    A("s_waitcnt lgkmcnt(0)")
    return L

OACC = 16
PK = [40, 44, 12]
def c_oproj():
    def grp(sg): return [mfma(OACC + 4*r, 48 + 4*(sg & 3), 64 + (sg*6 + r)*4, None if sg == 0 else OACC + 4*r) for r in range(6)]
    def rds(sg):
        return [trd(48 + 4*(sg & 3) + 2*h, 3, (sg & 7) * 4096 + h * 2048) for h in range(2)]
    def cv(r): return [cvt(PK[r >> 1] + 2*(r & 1), OACC + 4*r, OACC + 4*r + 1), cvt(PK[r >> 1] + 2*(r & 1) + 1, OACC + 4*r + 2, OACC + 4*r + 3)]
    def st(p): return f"buffer_store_dwordx4 {v(PK[p],4)}, v10, {s(SWS,4)}, {s(S_T1)} offen offset:{p*1024}{OPT['stf']}"
    r3 = rds(3)
    pro = stamp("oproj start") + weave(grp(0), {0: [r3[0]], 1: [r3[1]]})
    body = stamp("o", fine=True)
    for sg in range(1, 8):
        rr = rds(sg + 3)
        G = {0: [rr[0]], 1: [rr[1]]}
        pre = {0: ["s_waitcnt lgkmcnt(4)"]}
        if sg == 4:
            G[2] = [f"s_add_u32 {s(S_T0)}, {s(S_T0)}, {32*K1}", f"s_cmp_eq_u32 {s(S_T0)}, {64*K1}"]
            G[3] = [f"s_cselect_b32 {s(S_T0)}, {128*K1}, {s(S_T0)}", f"s_cmp_eq_u32 {s(S_T0)}, {160*K1}"]
            G[4] = [f"s_cselect_b32 {s(S_T0)}, 0, {s(S_T0)}", f"s_sub_u32 {s(S_CNT)}, {s(S_CNT)}, 1"]
            G[5] = [f"v_add_u32 v3, {s(S_T0)}, v2", f"s_cmp_eq_u32 {s(S_CNT)}, 0"]
        if sg == 5:
            G = {2: ["s_waitcnt lgkmcnt(0)", "BARRIER_UNLESS_LAST"], 3: [rr[0]], 4: [rr[1]]}
        if sg in (6, 7): pre = {}
        body += weave(grp(sg), G, pre)
    nxt = weave(grp(0), {0: [r3[0]] + cv(1), 1: [r3[1]] + cv(2), 2: [st(0)] + cv(3), 3: cv(4), 4: [st(1)] + cv(5), 5: [st(2), f"s_add_u32 {s(S_T1)}, {s(S_T1)}, {4*3072}"]},
                {0: ["s_waitcnt lgkmcnt(4)"] + cv(0)})
    tail = ["s_nop 0"] + cv(0) + cv(1) + [st(0)] + cv(2) + cv(3) + [st(1)] + cv(4) + cv(5) + [st(2)]
    def rep(b, last):
        o = []
        for x in b:
            if x == "BARRIER_UNLESS_LAST":
                if last is None: o += ["s_cbranch_scc1 L_onb", "s_barrier", "L_onb:"]
                elif last: o += ["s_cbranch_scc1 L_onb"]
                else: o += ["s_cbranch_scc1 L_onb", "s_barrier"]
            else: o.append(x)
        return o
    code = pro + ["L_o:"] + rep(body, None) + ["s_cbranch_scc1 L_ot"] + nxt + ["s_branch L_o", "L_ot:"] + tail
    trace = pro + (rep(body, False) + ["s_cbranch_scc1 L_ot"] + nxt + ["s_branch L_o"]) * 8 + rep(body, True) + ["s_cbranch_scc1 L_ot"] + tail
    return code, trace

def c_finish():
    L = []
    if OPT["stamps"]:
        L += stamp("end issue")
        L += ["s_waitcnt vmcnt(0) lgkmcnt(0)"] + stamp("end") + ["s_waitcnt lgkmcnt(0)", "v_writelane_b32 v1, s96, m0"]
        L += ["s_add_u32 s56, s18, 0x2000000", "s_addc_u32 s57, s19, 0", "s_mov_b32 s58, 0x40000", "s_mov_b32 s59, 0x20000",
              "s_lshl_b32 s50, s2, 2", f"s_add_u32 s50, s50, {s(S_W)}", "s_lshl_b32 s50, s50, 8", "v_lshlrev_b32 v2, 2, v0",
              "buffer_store_dword v1, v2, s[56:59], s50 offen"]
    L += ["s_endpgm"]
    return L

def dma4(voffs, srd, soff, nt=False):
    if srd in OPT["nodma"]: return []
    nt = nt or {SX: "x", SWQ: "q", SWO: "o"}.get(srd, "-") in str(OPT["ntd"])
    return [f"buffer_load_dwordx4 {v(voffs[i])}, {s(srd,4)}, {s(soff)} offen offset:{1024*i}{' nt' if nt else ''} lds" for i in range(4)]

def NTT(): return ' nt' if OPT['ntt'] else ''
def bar(n): return ["s_barrier"] * n

def l_wq():
    L = []; A = L.append
    A(f"s_sub_u32 s60, {s(S_W)}, 4")
    A("v_lshrrev_b32 v10, 5, v0")
    A("v_bfe_u32 v11, v0, 2, 2")
    A("v_and_b32 v12, 0x13, v0")
    A("v_lshlrev_b32 v12, 4, v12")
    for i in range(4):
        A(f"v_add_u32 v13, {2*i}, v10")
        A("v_and_b32 v14, 3, v13")
        A("v_xor_b32 v14, v14, v11")
        A("v_lshl_add_u32 v14, v14, 6, v12")
        A("v_lshl_add_u32 v14, v13, 13, v14")
        A(f"v_subrev_u32 {v(2+i)}, {1024*i}, v14")
    A("v_lshrrev_b32 v10, 3, v0")
    A("v_mul_u32_u24 v10, 1152, v10")
    A("v_bfe_u32 v11, v0, 1, 2")
    A("v_lshrrev_b32 v12, 4, v0")
    A("v_xor_b32 v11, v11, v12")
    A("v_lshl_add_u32 v10, v11, 5, v10")
    A("v_and_b32 v11, 1, v0")
    A("v_lshl_add_u32 v10, v11, 4, v10")
    for i in range(4): A(f"v_add_u32 {v(6+i)}, {i*(8*1152-1024)}, v10")
    A(f"s_mul_i32 s56, s60, {GOFF[2]}")
    A(f"s_add_u32 s56, s56, {QST}")
    A("s_mov_b32 s61, s56")
    A(f"s_add_u32 s57, s56, {4*WQSLOT}")
    A(f"s_lshl_b32 s62, s60, {4+13}")
    def issue():
        return (["s_mov_b32 m0, s61", f"s_add_u32 s63, s62, {8*8192}"] + dma4([2,3,4,5], SWQ, 62) +
                [f"s_add_u32 m0, s61, {GOFF[1]}", f"s_add_u32 s61, s61, {WQSLOT}"] + dma4([2,3,4,5], SWQ, 63) +
                [f"s_add_u32 s62, s62, {32*8192}", "s_cmp_eq_u32 s61, s57", "s_cselect_b32 s61, s56, s61"])
    pro = L + [f"s_mov_b32 {s(S_CNT)}, 18"]
    body = issue() + [f"s_sub_u32 {s(S_CNT)}, {s(S_CNT)}, 1", f"s_cmp_gt_u32 {s(S_CNT)}, 15"]
    wb = ["s_waitcnt vmcnt(16)", "s_barrier", f"s_cmp_gt_u32 {s(S_CNT)}, 0"]
    tch = []
    if OPT["coop"] == 2:
        tch = [f"s_cmp_lg_u32 {s(S_CNT)}, 15", "s_cbranch_scc1 L_wq1",
               "s_lshr_b32 s58, s2, 5", "s_lshl_b32 s58, s58, 1", "s_add_u32 s58, s58, s60", "s_lshl_b32 s58, s58, 17", f"s_add_u32 s58, s58, {96*8192}",
               "v_lshrrev_b32 v20, 2, v0", "v_and_b32 v21, 3, v0", "v_lshlrev_b32 v20, 13, v20", "v_lshl_add_u32 v20, v21, 7, v20",
               f"buffer_load_dword v32, v20, {s(SWQ,4)}, s58 offen{NTT()}", f"s_add_u32 s58, s58, {256*8192}",
               f"buffer_load_dword v33, v20, {s(SWQ,4)}, s58 offen{NTT()}", "L_wq1:"]
    mid = ["s_waitcnt vmcnt(8)", "s_barrier", "s_waitcnt vmcnt(0)", "s_barrier", "s_barrier"]
    mid += [f"s_lshl_b32 s56, s60, 14", f"s_mul_i32 s62, s60, {128*1152}", f"s_movk_i32 s58, 0"]
    def wissue(slot_expr):
        o = slot_expr
        for q in range(4):
            o += [f"s_add_u32 m0, s61, {q*4096}", f"s_add_u32 s63, s62, {q*32*1152}"] + dma4([6,7,8,9], SWO, 63)
        o += ["s_add_u32 s62, s62, 128"]
        return o
    def slot_const(k): return [f"s_add_u32 s61, s56, {WOS[k]}"]
    pf = []
    if OPT["coop"] and "o" not in str(OPT["ts"]):
        pf = ["s_lshr_b32 s57, s2, 5", "s_lshl_b32 s57, s57, 1", "s_add_u32 s57, s57, s60", "s_lshl_b32 s57, s57, 13", "v_lshlrev_b32 v20, 7, v0"]
        pfu = [[f"buffer_load_dword {v(32+u)}, v20, {s(SWO,4)}, s57 offen{NTT()}", f"s_add_u32 s57, s57, {1024*128}"] for u in range(3)]
    wd = [int(x) for x in str(OPT["wod"]).split(".")]
    wp = [int(x) for x in str(OPT["wop"]).split(".")]
    assert wd[1] >= 12 and wd[2] >= 14 and wd == sorted(wd) and wd[1] <= 16 and wd[2] <= 17 and max(wp) < wd[0]
    att = list(pf)
    for q in range(1, 17):
        att += ["s_barrier"]
        for u in range(3):
            if pf and wp[u] == q: att += pfu[u]
        for k in range(3):
            if wd[k] == q: att += wissue(slot_const(k))
    att += [f"s_waitcnt vmcnt({32 if wd[2] <= 16 else 16})", "s_barrier"] + (wissue(slot_const(2)) if wd[2] == 17 else [])
    att += [f"s_mov_b32 {s(S_CNT)}, 6", f"s_mov_b32 s58, {WOS[0]}"]
    nextslot = ["s_add_u32 s61, s56, s58", f"s_add_u32 s58, s58, {32*K1}", f"s_cmp_eq_u32 s58, {64*K1}", f"s_cselect_b32 s58, {128*K1}, s58",
                f"s_cmp_eq_u32 s58, {160*K1}", "s_cselect_b32 s58, 0, s58"]
    wbody = ["s_waitcnt vmcnt(16)", "s_barrier"] + wissue(nextslot) + [f"s_sub_u32 {s(S_CNT)}, {s(S_CNT)}, 1", f"s_cmp_gt_u32 {s(S_CNT)}, 0"]
    fin = ["s_waitcnt vmcnt(16)", "s_barrier", "s_waitcnt vmcnt(0)", "s_barrier", "s_endpgm"]
    code = pro + ["L_wq:"] + body + ["s_cbranch_scc1 L_wq"] + tch + wb + ["s_cbranch_scc1 L_wq"] + mid + att + ["L_wo:"] + wbody + ["s_cbranch_scc1 L_wo"] + fin
    trace = pro + (body + ["s_cbranch_scc1 L_wq"]) * 2 + (body + ["s_cbranch_scc1 L_wq"] + wb + ["s_cbranch_scc1 L_wq"]) * 16 + mid + att + (wbody + ["s_cbranch_scc1 L_wo"]) * 6 + fin
    return code, trace

def kv_voffs(kind, base):
    L = []; A = L.append
    A("v_lshrrev_b32 v10, 4, v0")
    A("v_and_b32 v11, 15, v0")
    A("v_lshlrev_b32 v13, 8, v10")
    for i in range(4 if kind == "K" else 2):
        A(f"v_add_u32 v12, {4*i}, v10")
        if kind == "V": A("v_lshlrev_b32 v12, 1, v12")
        A("v_xor_b32 v12, v12, v11")
        A(f"v_lshl_add_u32 {v(base+i)}, v12, 4, v13")
    return L

def kv_tile(kind, vo, st):
    srd = SK if kind == "K" else SV
    regs = [vo, vo+1, vo+2, vo+3] if kind == "K" else [vo, vo+1, vo, vo+1]
    o = [f"s_and_b32 s56, {s(st)}, 7", "s_lshl_b32 s56, s56, 14"]
    if kind == "V": o += ["s_add_u32 s56, s56, 8192"]
    o += [f"s_add_u32 s57, {s(st)}, {s(S_ROT)}", "s_and_b32 s57, s57, 15", "s_mov_b32 m0, s56", "s_lshl_b32 s57, s57, 13"]
    o += dma4(regs, srd, 57, nt=True)
    o += ["s_add_u32 m0, s56, 4096", "s_add_u32 s57, s57, 4096"] + dma4(regs, srd, 57, nt=True)
    o += [f"s_add_u32 {s(st)}, {s(st)}, 1"]
    return o

def l_x():
    L = []; A = L.append
    A("v_lshrrev_b32 v10, 3, v0")
    A("v_mul_u32_u24 v10, 1152, v10")
    A("v_and_b32 v11, 7, v0")
    A("v_lshrrev_b32 v12, 4, v0")
    for i in range(4):
        A(f"v_xor_b32 v13, {4*(i&1)}, v12")
        A("v_xor_b32 v13, v13, v11")
        A("v_lshl_add_u32 v13, v13, 4, v10")
        A(f"v_add_u32 {v(2+i)}, {i*(8*1152-1024)}, v13")
    A(f"s_mov_b32 s61, {XST}")
    A("s_mov_b32 s62, 0")
    def issue():
        o = []
        for q in range(3):
            o += [f"s_add_u32 m0, s61, {q*4096}", f"s_add_u32 s63, s62, {q*32*1152}"] + dma4([2,3,4,5], SX, 63)
        o += ["s_add_u32 s62, s62, 128", f"s_add_u32 s61, s61, {XSLOT}", f"s_cmp_eq_u32 s61, {XST+3*XSLOT}", f"s_cselect_b32 s61, {XST}, s61"]
        return o
    pro = L + [f"s_mov_b32 {s(S_CNT)}, 9"]
    body = issue() + [f"s_sub_u32 {s(S_CNT)}, {s(S_CNT)}, 1", f"s_cmp_gt_u32 {s(S_CNT)}, 6"]
    b0 = [f"s_cmp_lt_u32 {s(S_CNT)}, 6"]
    b0b = ["s_waitcnt vmcnt(24)", "s_barrier"]
    if OPT["coop"] == 2:
        tx = ["s_lshr_b32 s56, s2, 3", "s_and_b32 s56, s56, 3", "s_lshl_b32 s56, s56, 6", "v_add_u32 v21, s56, v0"]
        for u in range(3):
            tx += [f"v_add_u32 v22, {288+256*u}, v21", "v_mul_u32_u24 v23, 683, v22", "v_lshrrev_b32 v23, 16, v23",
                   "v_mul_u32_u24 v24, 96, v23", "v_sub_u32 v24, v22, v24", "v_mul_u32_u24 v24, 1152, v24",
                   f"v_lshl_add_u32 {v(26+u)}, v23, 7, v24", f"buffer_load_dword {v(40+u)}, {v(26+u)}, {s(SX,4)}, 0 offen{NTT()}"]
        b0b = tx + ["s_waitcnt vmcnt(27)", "s_barrier"]
    wb = ["s_barrier", "s_waitcnt vmcnt(12)", "s_barrier", f"s_cmp_gt_u32 {s(S_CNT)}, 0"]
    mid = ["s_barrier", "s_waitcnt vmcnt(0)", "s_barrier"] + kv_voffs("V", 6) + ["s_barrier", "s_barrier", "s_mov_b32 s60, 3"]
    W = OPT["kvw"]
    vt = kv_tile("V", 6, 60)
    va = vt * (W - 3)
    issued = W
    for q in range(1, 17):
        need = q - 1
        if need >= 3: va += [f"s_waitcnt vmcnt({8*(issued-1-need)})"]
        va += ["s_barrier"]
        if issued < 16: va += vt; issued += 1
    va = compress(va, "L_v", 61)
    fin = bar(9) + ["s_endpgm"]
    code = (pro + ["L_x:"] + body + ["s_cbranch_scc1 L_x"] + b0 + ["s_cbranch_scc1 L_x1"] + b0b + ["L_x1:"] + wb + ["s_cbranch_scc1 L_x"] + mid + va[0] + fin)
    trace = pro + body * 2 + body + b0 + b0b + wb + (body + b0 + wb) * 6 + mid + va[1] + fin
    return code, trace

def compress(seq, label, cnt):
    idx = [i for i, x in enumerate(seq) if x == "s_barrier"]
    segs = [seq[a+1:b+1] for a, b in zip(idx, idx[1:])]
    best = (0, 0)
    i = 0
    while i < len(segs):
        j = i
        while j + 1 < len(segs) and segs[j+1] == segs[i]: j += 1
        if (j - i + 1) * len(segs[i]) > best[0] * (len(segs[best[1]]) if segs else 0) and j > i: best = (j - i + 1, i)
        i = j + 1
    n, i = best
    if n < 2: return seq, seq
    a = idx[i] + 1; b = idx[i + n] + 1
    body = segs[i] + [f"s_sub_u32 s{cnt}, s{cnt}, 1", f"s_cmp_gt_u32 s{cnt}, 0"]
    code = seq[:a] + [f"s_mov_b32 s{cnt}, {n}", label + ":"] + body + [f"s_cbranch_scc1 {label}"] + seq[b:]
    trace = seq[:a] + [f"s_mov_b32 s{cnt}, {n}"] + (body + [f"s_cbranch_scc1 {label}"]) * n + seq[b:]
    return code, trace

def coop_xwq():
    L = []; A = L.append
    A("s_lshr_b32 s56, s2, 3")
    A("s_lshr_b32 s57, s56, 2")
    A("s_and_b32 s56, s56, 3")
    A("v_lshrrev_b32 v20, 2, v0"); A("v_and_b32 v21, 3, v0")
    A("v_lshlrev_b32 v20, 13, v20"); A("v_lshl_add_u32 v20, v21, 7, v20")
    A("s_lshl_b32 s57, s57, 17")
    A("s_lshl_b32 s56, s56, 6"); A("v_add_u32 v21, s56, v0")
    xs = []
    for u in range(4):
        xs.append([f"v_add_u32 v22, {256*u}, v21", "v_mul_u32_u24 v23, 683, v22", "v_lshrrev_b32 v23, 16, v23",
                   "v_mul_u32_u24 v24, 96, v23", "v_sub_u32 v24, v22, v24", "v_mul_u32_u24 v24, 1152, v24",
                   f"v_lshl_add_u32 {v(26+u)}, v23, 7, v24",
                   f"buffer_load_dword {v(40+u)}, {v(26+u)}, {s(SX,4)}, 0 offen{NTT()}"])
    for u in range(5):
        A(f"buffer_load_dword {v(32+u)}, v20, {s(SWQ,4)}, s57 offen{NTT()}")
        A(f"s_add_u32 s57, s57, {128*8192}")
        if u < 4: L += xs[u]
    return L

def l_k():
    tl = []
    if OPT["tlb"]:
        tl = ["v_mov_b32 v50, 0"] + [f"buffer_load_dword {v(51+i)}, v50, {s(srd,4)}, 0 offen{NTT()}" for i, srd in enumerate((SK, SV, SWO, SWS))]
    pro = (coop_xwq() if OPT["coop"] == 1 else []) + tl + kv_voffs("K", 2) + kv_voffs("V", 6) + ["s_mov_b32 s60, 0", "s_mov_b32 s61, 0"]
    ek = [int(x) for x in str(OPT["ekv"]).split(".")]
    assert len(ek) == 7 and ek == sorted(ek)
    ts = []
    if OPT["coop"] == 3:
        pro += ["s_lshr_b32 s56, s2, 3", "s_lshr_b32 s57, s56, 2", "s_and_b32 s56, s56, 3",
                "v_lshrrev_b32 v20, 2, v0", "v_and_b32 v21, 3, v0", "v_lshlrev_b32 v20, 13, v20", "v_lshl_add_u32 v20, v21, 7, v20",
                "s_lshl_b32 s64, s57, 17", f"s_add_u32 s64, s64, {96*8192}", "s_lshl_b32 s65, s57, 13", "v_lshlrev_b32 v25, 7, v0",
                "s_lshl_b32 s56, s56, 6", "v_add_u32 v21, s56, v0"]
        for u in range(3):
            pro += [f"v_add_u32 v22, {288+256*u}, v21", "v_mul_u32_u24 v23, 683, v22", "v_lshrrev_b32 v23, 16, v23",
                    "v_mul_u32_u24 v24, 96, v23", "v_sub_u32 v24, v22, v24", "v_mul_u32_u24 v24, 1152, v24", f"v_lshl_add_u32 {v(26+u)}, v23, 7, v24"]
        cnt = dict(q=0, x=0, o=0)
        for n, tok in enumerate(str(OPT["ts"]).split(".")):
            kind, bi = tok[0], int(tok[1:]); u = cnt[kind]; cnt[kind] += 1
            if kind == "q": ins = [f"buffer_load_dword {v(32+n)}, v20, {s(SWQ,4)}, s64 offen{NTT()}", f"s_add_u32 s64, s64, {128*8192}"]
            if kind == "x": ins = [f"buffer_load_dword {v(32+n)}, {v(26+u)}, {s(SX,4)}, 0 offen{NTT()}"]
            if kind == "o": ins = [f"buffer_load_dword {v(32+n)}, v25, {s(SWO,4)}, s65 offen", f"s_add_u32 s65, s65, {512*128}"]
            ts.append((bi, ins))
        assert cnt["q"] <= 4 and cnt["x"] <= 3 and cnt["o"] <= 5
    early = []
    for bi in range(-1, 18):
        if bi >= 0: early += ["s_barrier"]
        for b2, ins in ts:
            if b2 == bi: early += ins
        for n, e in enumerate(ek):
            if e == bi: early += (["s_waitcnt vmcnt(40)"] if n >= 5 else []) + kv_tile("V" if n & 1 else "K", 6 if n & 1 else 2, 61 if n & 1 else 60)
    W = OPT["kvw"]
    kb = kv_tile("K", 2, 60)
    def pos(kind, t): return (2 * t + (kind == "V")) if t < 3 or (t == 3 and kind == "K") else 3 + t
    seq = ["s_waitcnt vmcnt(48)", "s_barrier"]
    issued = 4
    def issue():
        nonlocal issued
        o = []
        if (3 + issued + 1 - lastw - 1) * 8 > 63: o = ["s_waitcnt vmcnt(48)"]
        issued += 1
        return o + kb
    lastw = 0
    for _ in range(W - 3): seq += issue()
    for q in range(1, 17):
        need = max(pos("K", min(q, 15)), pos("V", q - 1) if q - 1 < 3 else 0)
        n = min(8 * (3 + issued - 1 - need), 56)
        seq += [f"s_waitcnt vmcnt({n})", "s_barrier"]
        lastw = 3 + issued - 1 - n // 8
        if issued < 16: seq += issue()
    kc, kt = compress(seq, "L_k", 62)
    fin = bar(9) + ["s_endpgm"]
    code = pro + early + kc + fin
    trace = pro + early + kt + fin
    return code, trace

def reduce_kernel():
    L = []; A = L.append
    A("s_cmp_ge_u32 s2, 27")
    A("s_cbranch_scc1 L_rend")
    if OPT["stamps"] == 3: A("s_memrealtime s[30:31]")
    A("s_load_dwordx2 s[4:5], s[0:1], 40")
    A("s_load_dwordx2 s[6:7], s[0:1], 56")
    A("v_lshrrev_b32 v1, 6, v0")
    A("v_lshlrev_b32 v2, 4, v0")
    A("s_lshl_b32 s20, s2, 12")
    A("v_readfirstlane_b32 s21, v1")
    A("v_add_u32 v2, s20, v2")
    A(f"s_mul_i32 s22, s3, {16*110592}")
    A("s_mul_i32 s23, s3, 110592")
    if OPT["wsoff"]: A(f"s_add_u32 s22, s22, {OPT['wsoff'] << 20}")
    A(f"s_mov_b32 s10, {16*110592}"); A("s_mov_b32 s11, 0x20000")
    A("s_mov_b32 s14, 110592"); A("s_mov_b32 s15, 0x20000")
    A("s_waitcnt lgkmcnt(0)")
    A("s_add_u32 s8, s6, s22"); A("s_addc_u32 s9, s7, 0")
    A("s_add_u32 s12, s4, s23"); A("s_addc_u32 s13, s5, 0")
    A("s_mov_b32 s24, 0")
    for j in range(16):
        A(f"buffer_load_dwordx4 {v(16+4*j,4)}, v2, s[8:11], s24 offen{' nt' if OPT['ntr'] else ''}")
        if j < 15: A("s_add_u32 s24, s24, 110592")
    A("s_lshl_b32 s20, s2, 2"); A("s_add_u32 s20, s20, s21")
    A("s_mul_i32 s22, s20, 43"); A("s_lshr_b32 s22, s22, 7")
    A("s_mul_i32 s23, s22, 3"); A("s_sub_u32 s23, s20, s23")
    A(f"s_mul_i32 s23, s23, {32*1152}"); A("s_lshl_b32 s22, s22, 5"); A("s_add_u32 s22, s22, s23")
    A(f"s_add_u32 s23, s22, {16*1152}")
    A("v_and_b32 v3, 15, v0"); A("v_mul_u32_u24 v3, 1152, v3")
    A("v_bfe_u32 v4, v0, 4, 2"); A("v_lshl_add_u32 v3, v4, 3, v3")
    A("s_mov_b32 s25, 0xffff0000")
    for j in range(16):
        A(f"s_waitcnt vmcnt({15-j})")
        for i in range(4):
            r = 16 + 4*j + i
            if j == 0:
                A(f"v_lshlrev_b32 {v(8+2*i)}, 16, {v(r)}"); A(f"v_and_b32 {v(9+2*i)}, s25, {v(r)}")
            else:
                A(f"v_lshlrev_b32 v4, 16, {v(r)}"); A(f"v_and_b32 v5, s25, {v(r)}")
                A(f"v_pk_add_f32 {v(8+2*i,2)}, {v(8+2*i,2)}, v[4:5]")
    for i in range(4): A(cvt(4 + i, 8 + 2*i, 9 + 2*i))
    A("buffer_store_dwordx2 v[4:5], v3, s[12:15], s22 offen")
    A("buffer_store_dwordx2 v[6:7], v3, s[12:15], s23 offen")
    if OPT["stamps"] == 3:
        L += ["s_waitcnt vmcnt(0)", "s_memrealtime s[32:33]", "s_load_dwordx2 s[40:41], s[0:1], 48",
              "s_or_b32 s20, s2, s3", "s_or_b32 s20, s20, s21", "s_cmp_eq_u32 s20, 0", "s_cbranch_scc0 L_rend",
              "s_add_u32 s36, s6, 0x2000000", "s_addc_u32 s37, s7, 0", "s_mov_b32 s38, 0x40000", "s_mov_b32 s39, 0x20000",
              "s_mov_b32 s42, 64", "s_mov_b32 s43, 0x20000",
              "v_lshlrev_b32 v1, 2, v0", "v_lshlrev_b32 v2, 2, v0", f"s_mov_b32 s20, {OPT['wgsel']*1024}",
              "buffer_load_dword v3, v1, s[36:39], s20 offen", "s_waitcnt vmcnt(0) lgkmcnt(0)",
              "v_writelane_b32 v3, s30, 14", "v_writelane_b32 v3, s32, 15", "s_nop 0",
              "v_readfirstlane_b32 s20, v3", "s_nop 4", "v_subrev_u32 v3, s20, v3",
              "buffer_store_dword v3, v2, s[40:43], 0 offen"]
    A("L_rend:")
    A("s_endpgm")
    return L

def build():
    pro = prologue()
    cs = c_setup(); qc, qt = c_qproj(); qv = c_qcvt(); ac, at = c_attn(); on = c_onorm(); oc, ot = c_oproj(); fi = c_finish()
    wqc, wqt = l_wq(); xc, xt = l_x(); kc, kt = l_k()
    disp = ["L_loaders:", f"s_cmp_eq_u32 {s(S_W)}, 6", "s_cbranch_scc1 L_ldx", f"s_cmp_eq_u32 {s(S_W)}, 7", "s_cbranch_scc1 L_ldk"]
    code = pro + cs + qc + qv + ac + on + oc + fi + disp + wqc + ["L_ldx:"] + xc + ["L_ldk:"] + kc + ["L_end:", "s_endpgm"]
    red = reduce_kernel()
    if OPT["check"]:
        tot = 0; nb = set()
        for nm, tr in (("compute", pro + cs + qt + qv + at + on + ot + fi), ("wq", pro + wqt), ("x", pro + xt), ("k", pro + kt), ("red", red)):
            e, b = chk.check(tr, nm)
            tot += e
            if nm != "red": nb.add(b)
        assert len(nb) == 1, f"barrier mismatch {nb}"
    names = [x.split("; stamp ")[1] for x in pro + cs + qt + qv + at + on + ot + fi if "; stamp " in x]
    assert len(names) <= 64
    def fmt(L): return "\n".join(x if x.endswith(":") else "    " + x for x in L)
    def desc(name, vg, y):
        return f""".amdhsa_kernel {name}
  .amdhsa_next_free_vgpr {vg}
  .amdhsa_next_free_sgpr 102
  .amdhsa_accum_offset {vg}
  .amdhsa_group_segment_fixed_size 0
  .amdhsa_kernarg_size 64
  .amdhsa_user_sgpr_count 2
  .amdhsa_user_sgpr_kernarg_segment_ptr 1
  .amdhsa_system_sgpr_workgroup_id_x 1
""" + ("  .amdhsa_system_sgpr_workgroup_id_y 1\n" if y else "") + ".end_amdhsa_kernel\n"
    return f"""; Fused GQA block: Q-proj + attention + O-proj partials per (batch, kv head) workgroup, then a reduce launch.
; @launch kernel={KMAIN} grid=(256,1,1) block=(512,1,1) lds=163840
; @launch kernel={KRED} grid=(27,16,1) block=(256,1,1) lds=0
.amdgcn_target "amdgcn-amd-amdhsa--gfx950"
.text
.globl {KMAIN}
.p2align 8
.type {KMAIN},@function
{KMAIN}:
{fmt(code)}
.globl {KRED}
.p2align 8
.type {KRED},@function
{KRED}:
{fmt(red)}
.section .rodata,"a"
.p2align 6
{desc(KMAIN, 256, False)}.p2align 6
{desc(KRED, 80, True)}"""

if __name__ == "__main__":
    out = sys.argv[1]
    for a in sys.argv[2:]:
        k, val = a.split("=")
        OPT[k] = int(val) if val.lstrip("-").isdigit() else val
    OPT["stf"] = OPT["stf"].replace("_", " ")
    if OPT["nodma"]: OPT["nodma"] = [dict(x=SX, k=SK, v=SV, q=SWQ, o=SWO)[c] for c in OPT["nodma"]]
    open(out, "w").write(build())
    import subprocess
    r = subprocess.run(["clang", "-x", "assembler", "-target", "amdgcn-amd-amdhsa", "-mcpu=gfx950", "-c", out, "-o", "gen_check.o"], capture_output=True, text=True)
    if r.returncode: print("ASM ERROR\n" + "\n".join(r.stderr.split("\n")[:12]))
    else:
        r = subprocess.run(["llvm-readelf", "-S", "gen_check.o"], capture_output=True, text=True)
        print(out, "text bytes:", [int(l.split()[6], 16) for l in r.stdout.split("\n") if " .text" in l])
```

```python
import sys, struct, math
sys.path.insert(0, "work")
import chk

KMAIN = "standalone__gqa_block_cached__near_ridge_kernel"
KRED = "gqa_reduce_kernel"
OPT = dict(stamps=0, dbg="", rot=1, check=1, nodma=(), wgsel=0, fine=0, coop=1, ekv='14.15.15.16.16.17.17', wop='8.10.12', wod='14.16.17', kvw=4, clr='', tlb=1, ntt=0, ts='', ntd='', ntr=0, wsoff=0, stf='_sc1', lim=600, dry=0)

def f2u(x): return struct.unpack("<I", struct.pack("<f", x))[0]
def v(a, n=1): return f"v{a}" if n == 1 else f"v[{a}:{a+n-1}]"
def s(a, n=1): return f"s{a}" if n == 1 else f"s[{a}:{a+n-1}]"
K1 = 1024
QST = 56 * K1
WQSLOT = 16416
GOFF = [0, 4104, 8208, 12312]
XST = QST + 4 * WQSLOT
XSLOT = 12288
assert XST + 3 * XSLOT <= 160 * K1
WOS = [128 * K1, 0, 32 * K1]
OXB = 64 * K1
def oxoff(idx): return idx * K1 + (8 * K1 if idx >= 40 else 0)
SX, SK, SV, SWQ, SWO, SWS = 24, 28, 32, 36, 40, 44
S_W, S_B, S_J, S_ROT = 20, 21, 22, 23
S_CNT, S_D, S_T0, S_T1, S_T2, S_T3, S_T4, S_T5 = 48, 49, 50, 51, 52, 53, 54, 55
S_STAMP = 64
QACC = 16
def qacc(T, r): return QACC + (T * 3 + r) * 4
FB = [112, 156]
def fwq(b, T): return FB[b] + 4 * T
def fx(b, r): return FB[b] + 32 + 4 * r
def qf(sx, r): return 208 + (sx * 3 + r) * 4
POOL = 16
BX, BZ, BY, LS, ONES, KAD, VAD = 48, 60, 72, 84, 96, 100, 104
def oacc(T, r): return 112 + (T * 3 + r) * 4
WQAD = 2
XAD = 6
XADB = 8
def mfma(d, a, b, c):
    cs = "0" if c is None else v(c, 4)
    return f"v_mfma_f32_16x16x32_bf16 {v(d,4)}, {v(a,4)}, {v(b,4)}, {cs}"
def trd(d, ad, off): return f"ds_read_b64_tr_b16 {v(d,2)}, {v(ad)} offset:{off}"
def rd128(d, ad, off): return f"ds_read_b128 {v(d,4)}, {v(ad)} offset:{off}"
def cvt(d, a, b): return f"v_cvt_pk_bf16_f32 {v(d)}, {v(a)}, {v(b)}"

def stamp(name="", first=False, fine=False):
    if not OPT["stamps"] or (fine and not OPT["fine"]): return []
    op = "s_memtime" if OPT["stamps"] == 2 else "s_memrealtime"
    pre = ["s_mov_b32 m0, 0"] if first else ["v_writelane_b32 v1, s96, m0", "s_add_u32 m0, m0, 1"]
    return pre + [f"{op} s[96:97]  ; stamp {name}"]

def weave(mf, gaps, pre=None):
    out = []
    for i, m in enumerate(mf):
        if pre and i in pre: out += pre[i]
        out.append(m)
        out += gaps.get(i, [])
    return out

def prologue():
    L = []
    A = L.append
    A("s_cmp_ge_u32 s2, 256")
    A("s_cbranch_scc1 L_end")
    A("s_load_dwordx16 s[4:19], s[0:1], 0")
    L += stamp("start", first=True)
    A("v_lshrrev_b32 v2, 6, v0")
    A("v_and_b32 v0, 63, v0")
    A("s_and_b32 s50, s2, 7")
    A("s_lshr_b32 s51, s2, 3")
    A(f"v_readfirstlane_b32 {s(S_W)}, v2")
    A("s_and_b32 s52, s50, 3")
    A("s_lshl_b32 s52, s52, 2")
    A("s_and_b32 s53, s51, 3")
    A(f"s_add_u32 {s(S_J)}, s52, s53")
    A("s_lshr_b32 s52, s50, 2")
    A("s_lshl_b32 s52, s52, 3")
    A("s_lshr_b32 s53, s51, 2")
    A(f"s_add_u32 {s(S_B)}, s52, s53")
    if OPT["rot"]:
        A(f"s_lshl_b32 {s(S_ROT)}, s51, 1")
        A(f"s_and_b32 {s(S_ROT)}, {s(S_ROT)}, 15")
    else:
        A(f"s_mov_b32 {s(S_ROT)}, 0")
    A(f"s_lshl_b32 s54, {s(S_B)}, 4")
    A(f"s_add_u32 s54, s54, {s(S_J)}")
    A(f"s_mul_i32 s50, {s(S_B)}, 110592")
    A("s_lshl_b32 s51, s54, 17")
    A(f"s_lshl_b32 s52, {s(S_J)}, 9")
    A(f"s_mul_i32 s53, {s(S_J)}, {256*1152}")
    A("s_mul_i32 s55, s54, 110592")
    if OPT["wsoff"]: A(f"s_add_u32 s55, s55, {OPT['wsoff'] << 20}")
    for srd, nrec in ((SX, 110592), (SK, 131072), (SV, 131072), (SWQ, 575 * 8192 + 512), (SWO, 256 * 1152), (SWS, 110592)):
        A(f"s_mov_b32 {s(srd+2)}, {nrec}")
        A(f"s_mov_b32 {s(srd+3)}, 0x20000")
    A("s_waitcnt lgkmcnt(0)")
    for srd, p, o in ((SX, 4, 50), (SK, 6, 51), (SV, 8, 51), (SWQ, 10, 52), (SWO, 12, 53), (SWS, 18, 55)):
        A(f"s_add_u32 {s(srd)}, {s(p)}, {s(o)}")
        A(f"s_addc_u32 {s(srd+1)}, {s(p+1)}, 0")
    A(f"s_cmp_ge_u32 {s(S_W)}, 4")
    A("s_cbranch_scc1 L_loaders")
    return L

def c_setup():
    L = []; A = L.append
    A("v_and_b32 v10, 15, v0")
    A("v_lshrrev_b32 v11, 4, v0")
    A("v_bfe_u32 v12, v0, 2, 2")
    A("v_and_b32 v13, 3, v0")
    A(f"s_lshr_b32 s50, {s(S_W)}, 1")
    A(f"s_and_b32 s51, {s(S_W)}, 1")
    A("v_mul_u32_u24 v14, 4104, v11")
    A("v_lshl_add_u32 v14, v12, 9, v14")
    A("v_lshl_add_u32 v14, v13, 4, v14")
    A("s_lshl_b32 s52, s50, 8")
    A(f"s_add_u32 s52, s52, {QST}")
    A("v_add_u32 v14, s52, v14")
    for sx in range(4):
        A(f"v_xor_b32 v15, {sx}, v12")
        A(f"v_lshl_add_u32 {v(WQAD+sx)}, v15, 6, v14")
    A("s_mul_i32 s52, s51, 6144")
    A(f"s_add_u32 s52, s52, {XST}")
    A("v_lshlrev_b32 v14, 7, v10")
    A("v_add_u32 v14, s52, v14")
    A("v_lshrrev_b32 v15, 1, v10")
    A("v_xor_b32 v15, v15, v11")
    A(f"v_lshl_add_u32 {v(XADB)}, v15, 4, v14")
    A(f"v_xor_b32 {v(XADB+1)}, 64, {v(XADB)}") if (XST % 128 == 0) else None
    assert XST % 128 == 0
    A(f"v_mov_b32 {v(XAD)}, {v(XADB)}")
    A(f"v_mov_b32 {v(XAD+1)}, {v(XADB+1)}")
    A(f"s_mov_b32 {s(S_D)}, {2*WQSLOT}")
    A(f"s_mov_b32 {s(S_T0)}, 0")
    A(f"s_mov_b32 {s(S_CNT)}, 9")
    return L

def q_reads(buf, wqoff, xad):
    R = []
    for r in range(3): R.append(rd128(fx(buf, r), xad, r * 2048))
    for T in range(8):
        sx, p = T >> 1, T & 1
        for h in range(2):
            R.append(trd(fwq(buf, T) + 2 * h, WQAD + sx, wqoff + h * 2048 + 8 * p))
    return R

def q_mfmas(buf, first=False):
    return [mfma(qacc(T, r), fwq(buf, T), fx(buf, r), None if first else qacc(T, r)) for T in range(8) for r in range(3)]

def q_step(buf, reads, extra=None):
    gaps = {}
    for i, r in enumerate(reads): gaps.setdefault(i, []).append(r)
    if extra:
        for k, x in extra.items(): gaps.setdefault(k, []).extend(x)
    return ["s_waitcnt lgkmcnt(0)", "s_barrier"] + weave(q_mfmas(buf), gaps)

def c_qproj():
    pro = [f"v_mov_b32 {v(QACC+i)}, 0" for i in range(96)]
    pro += ["s_barrier"] + stamp("B0") + q_reads(0, 0, XAD)
    exE = {19: [f"v_add_u32 {v(WQAD)}, {s(S_D)}, {v(WQAD)}", f"v_add_u32 {v(WQAD+1)}, {s(S_D)}, {v(WQAD+1)}"],
           20: [f"v_add_u32 {v(WQAD+2)}, {s(S_D)}, {v(WQAD+2)}", f"v_add_u32 {v(WQAD+3)}, {s(S_D)}, {v(WQAD+3)}"],
           3: [f"s_add_u32 {s(S_T0)}, {s(S_T0)}, {XSLOT}"],
           4: [f"s_cmp_eq_u32 {s(S_T0)}, {3*XSLOT}"],
           5: [f"s_cselect_b32 {s(S_T0)}, 0, {s(S_T0)}"],
           21: [f"v_add_u32 {v(XAD)}, {s(S_T0)}, {v(XADB)}", f"v_add_u32 {v(XAD+1)}, {s(S_T0)}, {v(XADB+1)}"],
           22: [f"s_sub_u32 {s(S_D)}, 0, {s(S_D)}", f"s_sub_u32 {s(S_CNT)}, {s(S_CNT)}, 1"],
           23: [f"s_cmp_eq_u32 {s(S_CNT)}, 0"]}
    E = q_step(0, q_reads(1, WQSLOT, XAD + 1), exE)
    E = E[:2] + stamp("q", fine=True) + E[2:]
    O = q_step(1, q_reads(0, 0, XAD))
    z = [f"v_mov_b32 {v(112+i)}, 0" for i in range(44)]
    P17 = q_step(1, [], {i: z[2*i:2*i+2] for i in range(22)})
    code = pro + ["L_q:"] + E + ["s_cbranch_scc1 L_q17"] + O + ["s_branch L_q", "L_q17:"] + P17
    trace = pro + (E + ["s_cbranch_scc1 L_q17"] + O + ["s_branch L_q"]) * 8 + E + ["s_cbranch_scc1 L_q17"] + P17
    return code, trace

def c_qcvt():
    L = []; A = L.append
    L += stamp("qproj done")
    sc = (128 ** -0.5) * math.log2(math.e)
    A(f"s_mov_b32 s50, 0x{f2u(sc):08x}")
    A("s_mov_b32 s51, s50")
    for i in range(44, 96): A(f"v_mov_b32 {v(112+i)}, 0")
    order = [6, 7, 0, 1, 2, 3, 4, 5]
    def conv(T):
        o = []
        for r in range(3):
            a = qacc(T, r)
            o.append(f"v_pk_mul_f32 {v(a,2)}, {v(a,2)}, s[50:51]")
            o.append(f"v_pk_mul_f32 {v(a+2,2)}, {v(a+2,2)}, s[50:51]")
        for r in range(3):
            a = qacc(T, r); d = qf(T >> 1, r) + 2 * (T & 1)
            o.append(cvt(d, a, a + 1)); o.append(cvt(d + 1, a + 2, a + 3))
        return o
    for T in order[:5]: L += conv(T)
    for sx in range(4):
        A(f"v_xor_b32 v14, {4*sx}, v11")
        A("v_xor_b32 v14, v14, v10")
        A("v_lshlrev_b32 v14, 4, v14")
        A(f"v_lshl_add_u32 {v(KAD+sx)}, v10, 8, v14")
    for f in range(8): A(rd128(POOL + 4 * f, KAD + (f & 3), (f >> 2) * 4096))
    A("v_lshl_add_u32 v14, v11, 2, v12")
    A("v_lshlrev_b32 v15, 8, v14")
    A("v_lshl_add_u32 v15, v13, 3, v15")
    A("v_add_u32 v15, 8192, v15")
    A("v_and_b32 v14, 7, v14")
    for T in range(8):
        A(f"v_xor_b32 v9, {T}, v14")
        A(f"v_lshl_add_u32 {v(VAD+T)}, v9, 5, v15")
    for T in order[5:]: L += conv(T)
    for i in range(12): A(f"v_mov_b32 {v(LS+i)}, 0")
    for i in range(4): A(f"v_mov_b32 {v(ONES+i)}, 0x3f803f80")
    A(f"s_mov_b32 {s(S_D)}, {32*K1}")
    A(f"s_mov_b32 {s(S_CNT)}, 8")
    return L

E0G = [16, 19, 22, 25, 27, 28, 30, 31, 33, 34, 36, 37]
E1G = [39, 40, 42, 43, 45, 46, 48, 49]
E1N = [0, 1, 4, 7]
def ex(r): return f"v_exp_f32 {v(r)}, {v(r)}"

def half(odd, qk=True, pv=True):
    cur = BZ if odd else BX
    prv = BX if odd else BZ
    off = 0 if odd else 16 * K1
    mf = []
    for f in range(8):
        kt, sx = f >> 2, f & 3
        for r in range(3):
            d = (cur if kt == 0 else BY) + 4 * r
            mf.append(mfma(d, POOL + 4 * f, qf(sx, r), None if sx == 0 else d))
    for T in range(8):
        for r in range(3):
            mf.append(mfma(oacc(T, r), POOL + 4 * T, prv + 4 * r, oacc(T, r)))
    for r in range(3): mf.append(mfma(LS + 4 * r, ONES, prv + 4 * r, LS + 4 * r))
    G = {i: [] for i in range(51)}
    if pv:
        for T in range(8):
            G[3*T+2].append(trd(POOL + 4*T, VAD + T, off))
            G[3*T+3].append(trd(POOL + 4*T + 2, VAD + T, off + 4096))
        for i, g in enumerate(E1N): G[g].append(ex(BY + 8 + i))
        G[2].append(cvt(prv + 8 + 2, BY + 8, BY + 9))
        G[8].append(cvt(prv + 8 + 3, BY + 10, BY + 11))
    if qk:
        for f in range(8): G[24 + 3*f + 2].append(rd128(POOL + 4*f, KAD + (f & 3), off + (f >> 2) * 4096))
        for i, g in enumerate(E0G): G[g].append(ex(cur + i))
        for r, (g0, g1) in enumerate([(20, 26), (29, 32), (35, 38)]):
            G[g0].append(cvt(cur + 4*r, cur + 4*r, cur + 4*r + 1))
            G[g1].append(cvt(cur + 4*r + 1, cur + 4*r + 2, cur + 4*r + 3))
        for i, g in enumerate(E1G): G[g].append(ex(BY + i))
        for r, (g0, g1) in enumerate([(41, 44), (47, 50)]):
            G[g0].append(cvt(cur + 4*r + 2, BY + 4*r, BY + 4*r + 1))
            G[g1].append(cvt(cur + 4*r + 3, BY + 4*r + 2, BY + 4*r + 3))
    def xr(r): return f"v_xor_b32 {v(r)}, {s(S_D)}, {v(r)}"
    if qk and pv:
        if odd:
            G[10] += [xr(KAD), xr(KAD + 1)]; G[13] += [xr(KAD + 2), xr(KAD + 3)]
            G[17] += [f"s_sub_u32 {s(S_CNT)}, {s(S_CNT)}, 1"]
            G[50] += [f"s_cmp_eq_u32 {s(S_CNT)}, 0"]
        else:
            G[10] += [xr(VAD), xr(VAD + 1)]; G[13] += [xr(VAD + 2), xr(VAD + 3)]
            G[17] += [xr(VAD + 4)]; G[21] += [xr(VAD + 5)]; G[23] += [xr(VAD + 6)]
            G[50] += [xr(VAD + 7), f"s_xor_b32 {s(S_D)}, {s(S_D)}, {64*K1}"]
    pre = {0: ["s_waitcnt lgkmcnt(4)"], 12: ["s_waitcnt lgkmcnt(7)"], 24: ["s_waitcnt lgkmcnt(7)", "s_barrier"], 36: ["s_waitcnt lgkmcnt(4)"]}
    if qk and pv: return weave(mf, G, pre)
    out = []
    if qk:
        pre = {0: ["s_waitcnt lgkmcnt(4)"], 12: ["s_waitcnt lgkmcnt(0)"]}
        out = weave(mf[:24], G, pre) + ["s_barrier"]
        rest = []
        for g in range(24, 51): rest += G[g]
        out += [x for x in rest if x.startswith("ds_")]
        va = [x for x in rest if not x.startswith("ds_")]
        for a, b in zip(va, va[1:] + [""]):
            out.append(a)
            if a.startswith("v_exp") and b.startswith("v_cvt"): out.append("s_nop 0")
        return out
    out = ["s_waitcnt lgkmcnt(0)"]
    rest = []
    for g in range(0, 25): rest += G[g]
    out += [x for x in rest if x.startswith("ds_")]
    va = [x for x in rest if not x.startswith("ds_")]
    for a, b in zip(va, va[1:] + [""]):
        out.append(a)
        if a.startswith("v_exp") and b.startswith("v_cvt"): out.append("s_nop 0")
    pre = {0: ["s_waitcnt lgkmcnt(8)", "s_nop 0"], 12: ["s_waitcnt lgkmcnt(0)"]}
    out += ["s_nop 1"] + mf[48:51] + weave(mf[24:48], {}, pre)
    return out

def c_attn():
    P = stamp("attn start") + half(False, pv=False)
    B = stamp("a", fine=True) + half(True); Ah = half(False)
    E = half(False, qk=False)
    code = P + ["L_a:"] + B + ["s_cbranch_scc1 L_ae"] + Ah + ["s_branch L_a", "L_ae:"] + E
    trace = P + (B + ["s_cbranch_scc1 L_ae"] + Ah + ["s_branch L_a"]) * 7 + B + ["s_cbranch_scc1 L_ae"] + E
    return code, trace

def c_onorm():
    L = []; A = L.append
    L += stamp("attn done")
    for r in range(3): A(f"v_rcp_f32 {v(LS+4*r+1)}, {v(LS+4*r)}")
    A(f"s_lshr_b32 s50, {s(S_W)}, 1")
    A(f"s_and_b32 s51, {s(S_W)}, 1")
    A("s_mul_i32 s52, s50, 24")
    A("s_mul_i32 s53, s51, 3")
    A("s_add_u32 s52, s52, s53")
    A("v_lshlrev_b32 v10, 4, v0")
    A(f"v_add_u32 v11, {OXB}, v10")
    for r in range(3): A(f"v_mov_b32 {v(LS+4*r)}, {v(LS+4*r+1)}")
    for sp in range(4):
        for r in range(3):
            d = 16 + (sp * 3 + r) * 4
            for p in range(2):
                a = oacc(2 * sp + p, r)
                A(f"v_pk_mul_f32 {v(a,2)}, {v(a,2)}, {v(LS+4*r,2)}")
                A(f"v_pk_mul_f32 {v(a+2,2)}, {v(a+2,2)}, {v(LS+4*r,2)}")
            for p in range(2):
                a = oacc(2 * sp + p, r)
                A(cvt(d + 2*p, a, a + 1)); A(cvt(d + 2*p + 1, a + 2, a + 3))
            A(f"s_add_u32 s53, s52, {sp*6+r}")
            A("s_cmp_ge_u32 s53, 40")
            A("s_cselect_b32 s54, 8, 0")
            A("s_add_u32 s53, s53, s54")
            A("s_lshl_b32 s53, s53, 10")
            A("v_add_u32 v12, s53, v11")
            A(f"ds_write_b128 v12, {v(d,4)}")
    A("v_lshrrev_b32 v12, 2, v0")
    A("v_bfe_u32 v13, v0, 3, 2")
    A(f"v_xor_b32 v13, {s(S_W)}, v13")
    A("v_lshlrev_b32 v13, 5, v13")
    A("v_lshl_add_u32 v13, v12, 7, v13")
    A("v_and_b32 v12, 3, v0")
    A("v_lshl_add_u32 v2, v12, 3, v13")
    A(f"v_add_u32 v3, {WOS[0]}, v2")
    A(f"s_mov_b32 {s(S_T0)}, {WOS[0]}")
    A(f"s_mul_i32 {s(S_T1)}, {s(S_W)}, 3072")
    A(f"s_mov_b32 {s(S_CNT)}, 9")
    A("s_waitcnt lgkmcnt(0)")
    A("s_barrier")
    L += stamp("OX")
    for sg in range(3):
        for h in range(2): A(trd(48 + 4*sg + 2*h, 3, sg * 4096 + h * 2048))
    for i in range(48):
        A(rd128(64 + 4*i, 11, oxoff(i)))
        if i % 8 == 7: A("s_waitcnt lgkmcnt(6)")
    A("s_waitcnt lgkmcnt(0)")
    return L

OACC = 16
PK = [40, 44, 12]
def c_oproj():
    def grp(sg): return [mfma(OACC + 4*r, 48 + 4*(sg & 3), 64 + (sg*6 + r)*4, None if sg == 0 else OACC + 4*r) for r in range(6)]
    def rds(sg):
        return [trd(48 + 4*(sg & 3) + 2*h, 3, (sg & 7) * 4096 + h * 2048) for h in range(2)]
    def cv(r): return [cvt(PK[r >> 1] + 2*(r & 1), OACC + 4*r, OACC + 4*r + 1), cvt(PK[r >> 1] + 2*(r & 1) + 1, OACC + 4*r + 2, OACC + 4*r + 3)]
    def st(p): return f"buffer_store_dwordx4 {v(PK[p],4)}, v10, {s(SWS,4)}, {s(S_T1)} offen offset:{p*1024}{OPT['stf']}"
    r3 = rds(3)
    pro = stamp("oproj start") + weave(grp(0), {0: [r3[0]], 1: [r3[1]]})
    body = stamp("o", fine=True)
    for sg in range(1, 8):
        rr = rds(sg + 3)
        G = {0: [rr[0]], 1: [rr[1]]}
        pre = {0: ["s_waitcnt lgkmcnt(4)"]}
        if sg == 4:
            G[2] = [f"s_add_u32 {s(S_T0)}, {s(S_T0)}, {32*K1}", f"s_cmp_eq_u32 {s(S_T0)}, {64*K1}"]
            G[3] = [f"s_cselect_b32 {s(S_T0)}, {128*K1}, {s(S_T0)}", f"s_cmp_eq_u32 {s(S_T0)}, {160*K1}"]
            G[4] = [f"s_cselect_b32 {s(S_T0)}, 0, {s(S_T0)}", f"s_sub_u32 {s(S_CNT)}, {s(S_CNT)}, 1"]
            G[5] = [f"v_add_u32 v3, {s(S_T0)}, v2", f"s_cmp_eq_u32 {s(S_CNT)}, 0"]
        if sg == 5:
            G = {2: ["s_waitcnt lgkmcnt(0)", "BARRIER_UNLESS_LAST"], 3: [rr[0]], 4: [rr[1]]}
        if sg in (6, 7): pre = {}
        body += weave(grp(sg), G, pre)
    nxt = weave(grp(0), {0: [r3[0]] + cv(1), 1: [r3[1]] + cv(2), 2: [st(0)] + cv(3), 3: cv(4), 4: [st(1)] + cv(5), 5: [st(2), f"s_add_u32 {s(S_T1)}, {s(S_T1)}, {4*3072}"]},
                {0: ["s_waitcnt lgkmcnt(4)"] + cv(0)})
    tail = ["s_nop 0"] + cv(0) + cv(1) + [st(0)] + cv(2) + cv(3) + [st(1)] + cv(4) + cv(5) + [st(2)]
    def rep(b, last):
        o = []
        for x in b:
            if x == "BARRIER_UNLESS_LAST":
                if last is None: o += ["s_cbranch_scc1 L_onb", "s_barrier", "L_onb:"]
                elif last: o += ["s_cbranch_scc1 L_onb"]
                else: o += ["s_cbranch_scc1 L_onb", "s_barrier"]
            else: o.append(x)
        return o
    code = pro + ["L_o:"] + rep(body, None) + ["s_cbranch_scc1 L_ot"] + nxt + ["s_branch L_o", "L_ot:"] + tail
    trace = pro + (rep(body, False) + ["s_cbranch_scc1 L_ot"] + nxt + ["s_branch L_o"]) * 8 + rep(body, True) + ["s_cbranch_scc1 L_ot"] + tail
    return code, trace

SFL, SPA, SOUT, SDB = 68, 72, 76, 64
FLOFF = 30 << 20
def red_setup():
    L = []; A = L.append
    A(f"s_mul_i32 s50, {s(S_B)}, {16*110592}")
    if OPT["wsoff"]: A(f"s_add_u32 s50, s50, {OPT['wsoff'] << 20}")
    A(f"s_add_u32 {s(SPA)}, s18, s50"); A(f"s_addc_u32 {s(SPA+1)}, s19, 0")
    A(f"s_mov_b32 {s(SPA+2)}, {16*110592}"); A(f"s_mov_b32 {s(SPA+3)}, 0x20000")
    A(f"s_mul_i32 s50, {s(S_B)}, 110592")
    A(f"s_add_u32 {s(SOUT)}, s14, s50"); A(f"s_addc_u32 {s(SOUT+1)}, s15, 0")
    A(f"s_mov_b32 {s(SOUT+2)}, 110592"); A(f"s_mov_b32 {s(SOUT+3)}, 0x20000")
    A("v_lshrrev_b32 v100, 4, v0")
    A("v_bfe_u32 v101, v0, 3, 1")
    A("v_and_b32 v102, 7, v0")
    A("v_mul_u32_u24 v103, 110592, v100")
    A("v_lshl_add_u32 v103, v101, 9, v103")
    A("v_lshl_add_u32 v103, v102, 4, v103")
    A("v_and_b32 v104, 1, v100")
    A("v_lshl_add_u32 v104, v104, 4, v102")
    A("v_mul_u32_u24 v104, 1152, v104")
    A("v_lshrrev_b32 v105, 5, v0")
    A("v_lshl_add_u32 v104, v105, 5, v104")
    A("v_lshl_add_u32 v104, v101, 4, v104")
    A("v_and_b32 v105, 1, v0")
    A("v_lshlrev_b32 v105, 4, v105")
    A("v_mov_b32 v106, 0x3f80")
    A("v_lshlrev_b32 v105, v105, v106")
    A("v_bfe_u32 v106, v0, 1, 3")
    A("v_lshlrev_b32 v106, v106, 1")
    for t in range(8): A(f"v_bfe_i32 {v(108+t)}, v106, {t}, 1")
    for t in range(8): A(f"v_and_b32 {v(108+t)}, {v(108+t)}, v105")
    A("v_mov_b32 v107, 0")
    return L

def red_decode():
    return ["s_mul_i32 s50, s86, 43", "s_lshr_b32 s50, s50, 9",
            "s_mul_i32 s51, s50, 12", "s_sub_u32 s51, s86, s51",
            "s_lshr_b32 s52, s51, 2",
            "s_bfe_u32 s53, s51, 0x10001",
            "s_and_b32 s51, s51, 1",
            "s_lshl_b32 s50, s50, 1", "s_add_u32 s50, s50, s51",
            "s_mul_i32 s91, s50, 6144", "s_lshl_b32 s92, s50, 6",
            "s_lshl_b32 s52, s52, 2", "s_add_u32 s52, s52, s53",
            f"s_mul_i32 s50, s52, {8*1152}", "s_add_u32 s92, s92, s50",
            "s_lshl_b32 s52, s52, 8", "s_lshl_b32 s53, s53, 7", "s_sub_u32 s52, s52, s53",
            "s_add_u32 s91, s91, s52"]

def red_unit():
    L = []; A = L.append
    for qd in range(4):
        for h in range(2):
            for a in range(2):
                A(f"buffer_load_dwordx4 {v(16+4*(4*qd+2*h+a),4)}, v103, {s(SPA,4)}, s91 offen offset:{h*3072+a*256} sc1")
        if qd < 3: A("s_add_u32 s91, s91, 442368")
    n = 0
    for qd in range(4):
        for h in range(2):
            for a in range(2):
                if a == 0: A(f"s_waitcnt vmcnt({14-n})")
                A(mfma(120+4*a, 108+4*h, 16+4*n, None if n < 2 else 120+4*a)); n += 1
    L += stamp("loaded")
    A("s_nop 7")
    for i in range(4): A(cvt(116+i, 120+2*i, 121+2*i))
    A(f"buffer_store_dwordx4 v[116:119], v104, {s(SOUT,4)}, s92 offen")
    return L

def X1(ins): return ["s_mov_b64 exec, 1"] + ins + ["s_mov_b64 exec, -1"]

def c_finish():
    pre = ["L_red:"] + stamp("end issue") + red_setup() + ["s_waitcnt vmcnt(0)"] + stamp("drained") + ["s_barrier",
          f"s_lshl_b32 s84, 1, {s(S_J)}", f"s_mov_b32 s82, {s(S_W)}", "s_mov_b32 s83, 1", "s_mov_b32 s88, 1"]
    own = ["L_own:", "s_cmp_eq_u32 s84, 0", "s_cbranch_scc1 L_rdone",
           "s_ff1_i32_b32 s85, s84", "s_bitset0_b32 s84, s85", "s_lshl_b32 s86, s82, 4", "s_add_u32 s86, s86, s85", "s_mov_b32 s87, s83",
           "L_unit:", "s_cmp_ge_u32 s86, 108", "s_cbranch_scc1 L_own"] + red_decode() + ["s_cmp_eq_u32 s88, 0", "s_cbranch_scc1 L_ugo"]
    gate = ["s_barrier", "ds_read_b32 v2, v107", "s_mov_b32 s88, 0", "s_waitcnt lgkmcnt(0)", "v_readfirstlane_b32 s50, v2"] + stamp("F2") + \
           ["s_cmp_eq_u32 s50, 0", "s_cbranch_scc1 L_rdone", "L_ugo:"]
    unit = red_unit() + ["s_add_u32 s86, s86, 16", "s_sub_u32 s87, s87, 1", "s_cmp_gt_u32 s87, 0", "s_cbranch_scc1 L_unit", "s_branch L_own"]
    done = ["L_rdone:"]
    if OPT["stamps"]:
        done += ["s_waitcnt vmcnt(0) lgkmcnt(0)"] + stamp("end") + ["s_waitcnt lgkmcnt(0)", "v_writelane_b32 v1, s96, m0",
              f"s_cmp_ge_u32 {s(S_W)}, 4", "s_cbranch_scc1 L_rend",
              "s_add_u32 s56, s18, 0x2000000", "s_addc_u32 s57, s19, 0", "s_mov_b32 s58, 0x40000", "s_mov_b32 s59, 0x20000",
              "s_lshl_b32 s50, s2, 2", f"s_add_u32 s50, s50, {s(S_W)}", "s_lshl_b32 s50, s50, 8", "v_lshlrev_b32 v2, 2, v0",
              "buffer_store_dword v1, v2, s[56:59], s50 offen", "L_rend:"]
    done += ["s_endpgm"]
    hsl = f"buffer_load_dword v20, v107, {s(SDB,4)}, s93 offen sc1  ; poll"
    p0 = ["L_poll:", "s_waitcnt vmcnt(0)", "s_barrier"] + X1([f"buffer_store_dword v21, v22, {s(SFL,4)}, 0 offen sc1  ; publish"]) + [f"s_mov_b32 s89, {OPT['lim']}", "s_mov_b32 s90, 0",
          "L_hs:", "v_readfirstlane_b32 s50, v20", "s_cmp_eq_u32 s50, 16", "s_cbranch_scc1 L_pf"]
    p1 = ["L_hsl:", hsl, "s_waitcnt vmcnt(0)", "s_sub_u32 s89, s89, 1", "s_cmp_gt_u32 s89, 0", "s_cbranch_scc1 L_hs", "s_branch L_to"]
    p2 = ["L_pf:", f"buffer_load_dword v23, v24, {s(SFL,4)}, 0 offen sc1  ; poll", "s_sub_u32 s89, s89, 1", "s_waitcnt vmcnt(0)",
          "v_cmp_ne_u32 vcc, 1, v23", "s_cbranch_vccz L_go"]
    p3 = ["s_cmp_gt_u32 s89, 0", "s_cbranch_scc1 L_pf",
          "L_to:", "s_cmp_eq_u32 s90, 1", "s_cbranch_scc1 L_quit"] + X1([f"buffer_store_dword v21, v22, {s(SFL,4)}, 0 offen offset:4 sc1"]) + \
         ["s_mov_b32 s90, 1", "s_mov_b32 s89, 2", "s_waitcnt vmcnt(0)", "s_branch L_hsl",
          "L_quit:", "ds_write_b32 v107, v107", "s_waitcnt lgkmcnt(0)", "s_barrier", "s_endpgm"]
    p4 = ["L_go:", "ds_write_b32 v107, v21", "s_waitcnt lgkmcnt(0)", "s_barrier",
          f"buffer_load_dword v23, v24, {s(SFL,4)}, 0 offen offset:4 sc1", "s_mov_b32 s82, 0", "s_mov_b32 s83, 7", "s_mov_b32 s88, 0",
          "s_waitcnt vmcnt(0)", "v_cmp_eq_u32 vcc, 1, v23", "s_nop 1", "s_and_b32 s84, vcc_lo, 0xffff", f"s_bitset0_b32 s84, {s(S_J)}", "s_branch L_own"]
    code = pre + own + gate + unit + done + p0 + p1 + p2 + p3 + p4
    tr_w = pre + own + gate + unit + own[:3] + done
    tr_p = p0 + p2 + p4 + own + unit + own[:3] + done
    return code, tr_w, tr_p

def dma4(voffs, srd, soff, nt=False):
    if srd in OPT["nodma"]: return []
    nt = nt or {SX: "x", SWQ: "q", SWO: "o"}.get(srd, "-") in str(OPT["ntd"])
    return [f"buffer_load_dwordx4 {v(voffs[i])}, {s(srd,4)}, {s(soff)} offen offset:{1024*i}{' nt' if nt else ''} lds" for i in range(4)]

def NTT(): return ' nt' if OPT['ntt'] else ''
def bar(n): return ["s_barrier"] * n

def l_wq():
    L = []; A = L.append
    A(f"s_sub_u32 s60, {s(S_W)}, 4")
    A("v_lshrrev_b32 v10, 5, v0")
    A("v_bfe_u32 v11, v0, 2, 2")
    A("v_and_b32 v12, 0x13, v0")
    A("v_lshlrev_b32 v12, 4, v12")
    for i in range(4):
        A(f"v_add_u32 v13, {2*i}, v10")
        A("v_and_b32 v14, 3, v13")
        A("v_xor_b32 v14, v14, v11")
        A("v_lshl_add_u32 v14, v14, 6, v12")
        A("v_lshl_add_u32 v14, v13, 13, v14")
        A(f"v_subrev_u32 {v(2+i)}, {1024*i}, v14")
    A("v_lshrrev_b32 v10, 3, v0")
    A("v_mul_u32_u24 v10, 1152, v10")
    A("v_bfe_u32 v11, v0, 1, 2")
    A("v_lshrrev_b32 v12, 4, v0")
    A("v_xor_b32 v11, v11, v12")
    A("v_lshl_add_u32 v10, v11, 5, v10")
    A("v_and_b32 v11, 1, v0")
    A("v_lshl_add_u32 v10, v11, 4, v10")
    for i in range(4): A(f"v_add_u32 {v(6+i)}, {i*(8*1152-1024)}, v10")
    A(f"s_mul_i32 s56, s60, {GOFF[2]}")
    A(f"s_add_u32 s56, s56, {QST}")
    A("s_mov_b32 s61, s56")
    A(f"s_add_u32 s57, s56, {4*WQSLOT}")
    A(f"s_lshl_b32 s62, s60, {4+13}")
    def issue():
        return (["s_mov_b32 m0, s61", f"s_add_u32 s63, s62, {8*8192}"] + dma4([2,3,4,5], SWQ, 62) +
                [f"s_add_u32 m0, s61, {GOFF[1]}", f"s_add_u32 s61, s61, {WQSLOT}"] + dma4([2,3,4,5], SWQ, 63) +
                [f"s_add_u32 s62, s62, {32*8192}", "s_cmp_eq_u32 s61, s57", "s_cselect_b32 s61, s56, s61"])
    pro = L + [f"s_mov_b32 {s(S_CNT)}, 18"]
    body = issue() + [f"s_sub_u32 {s(S_CNT)}, {s(S_CNT)}, 1", f"s_cmp_gt_u32 {s(S_CNT)}, 15"]
    wb = ["s_waitcnt vmcnt(16)", "s_barrier", f"s_cmp_gt_u32 {s(S_CNT)}, 0"]
    tch = []
    if OPT["coop"] == 2:
        tch = [f"s_cmp_lg_u32 {s(S_CNT)}, 15", "s_cbranch_scc1 L_wq1",
               "s_lshr_b32 s58, s2, 5", "s_lshl_b32 s58, s58, 1", "s_add_u32 s58, s58, s60", "s_lshl_b32 s58, s58, 17", f"s_add_u32 s58, s58, {96*8192}",
               "v_lshrrev_b32 v20, 2, v0", "v_and_b32 v21, 3, v0", "v_lshlrev_b32 v20, 13, v20", "v_lshl_add_u32 v20, v21, 7, v20",
               f"buffer_load_dword v32, v20, {s(SWQ,4)}, s58 offen{NTT()}", f"s_add_u32 s58, s58, {256*8192}",
               f"buffer_load_dword v33, v20, {s(SWQ,4)}, s58 offen{NTT()}", "L_wq1:"]
    mid = ["s_waitcnt vmcnt(8)", "s_barrier", "s_waitcnt vmcnt(0)", "s_barrier", "s_barrier"]
    mid += [f"s_lshl_b32 s56, s60, 14", f"s_mul_i32 s62, s60, {128*1152}", f"s_movk_i32 s58, 0"]
    def wissue(slot_expr):
        o = slot_expr
        for q in range(4):
            o += [f"s_add_u32 m0, s61, {q*4096}", f"s_add_u32 s63, s62, {q*32*1152}"] + dma4([6,7,8,9], SWO, 63)
        o += ["s_add_u32 s62, s62, 128"]
        return o
    def slot_const(k): return [f"s_add_u32 s61, s56, {WOS[k]}"]
    pf = []
    if OPT["coop"] and "o" not in str(OPT["ts"]):
        pf = ["s_lshr_b32 s57, s2, 5", "s_lshl_b32 s57, s57, 1", "s_add_u32 s57, s57, s60", "s_lshl_b32 s57, s57, 13", "v_lshlrev_b32 v20, 7, v0"]
        pfu = [[f"buffer_load_dword {v(32+u)}, v20, {s(SWO,4)}, s57 offen{NTT()}", f"s_add_u32 s57, s57, {1024*128}"] for u in range(3)]
    wd = [int(x) for x in str(OPT["wod"]).split(".")]
    wp = [int(x) for x in str(OPT["wop"]).split(".")]
    assert wd[1] >= 12 and wd[2] >= 14 and wd == sorted(wd) and wd[1] <= 16 and wd[2] <= 17 and max(wp) < wd[0]
    att = list(pf)
    for q in range(1, 17):
        att += ["s_barrier"]
        for u in range(3):
            if pf and wp[u] == q: att += pfu[u]
        for k in range(3):
            if wd[k] == q: att += wissue(slot_const(k))
    att += [f"s_waitcnt vmcnt({32 if wd[2] <= 16 else 16})", "s_barrier"] + (wissue(slot_const(2)) if wd[2] == 17 else [])
    att += [f"s_mov_b32 {s(S_CNT)}, 6", f"s_mov_b32 s58, {WOS[0]}"]
    nextslot = ["s_add_u32 s61, s56, s58", f"s_add_u32 s58, s58, {32*K1}", f"s_cmp_eq_u32 s58, {64*K1}", f"s_cselect_b32 s58, {128*K1}, s58",
                f"s_cmp_eq_u32 s58, {160*K1}", "s_cselect_b32 s58, 0, s58"]
    wbody = ["s_waitcnt vmcnt(16)", "s_barrier"] + wissue(nextslot) + [f"s_sub_u32 {s(S_CNT)}, {s(S_CNT)}, 1", f"s_cmp_gt_u32 {s(S_CNT)}, 0"]
    fin = ["s_waitcnt vmcnt(16)", "s_barrier", "s_waitcnt vmcnt(0)", "s_barrier", "s_branch L_red"]
    code = pro + ["L_wq:"] + body + ["s_cbranch_scc1 L_wq"] + tch + wb + ["s_cbranch_scc1 L_wq"] + mid + att + ["L_wo:"] + wbody + ["s_cbranch_scc1 L_wo"] + fin
    trace = pro + (body + ["s_cbranch_scc1 L_wq"]) * 2 + (body + ["s_cbranch_scc1 L_wq"] + wb + ["s_cbranch_scc1 L_wq"]) * 16 + mid + att + (wbody + ["s_cbranch_scc1 L_wo"]) * 6 + fin
    return code, trace

def kv_voffs(kind, base):
    L = []; A = L.append
    A("v_lshrrev_b32 v10, 4, v0")
    A("v_and_b32 v11, 15, v0")
    A("v_lshlrev_b32 v13, 8, v10")
    for i in range(4 if kind == "K" else 2):
        A(f"v_add_u32 v12, {4*i}, v10")
        if kind == "V": A("v_lshlrev_b32 v12, 1, v12")
        A("v_xor_b32 v12, v12, v11")
        A(f"v_lshl_add_u32 {v(base+i)}, v12, 4, v13")
    return L

def kv_tile(kind, vo, st):
    srd = SK if kind == "K" else SV
    regs = [vo, vo+1, vo+2, vo+3] if kind == "K" else [vo, vo+1, vo, vo+1]
    o = [f"s_and_b32 s56, {s(st)}, 7", "s_lshl_b32 s56, s56, 14"]
    if kind == "V": o += ["s_add_u32 s56, s56, 8192"]
    o += [f"s_add_u32 s57, {s(st)}, {s(S_ROT)}", "s_and_b32 s57, s57, 15", "s_mov_b32 m0, s56", "s_lshl_b32 s57, s57, 13"]
    o += dma4(regs, srd, 57, nt=True)
    o += ["s_add_u32 m0, s56, 4096", "s_add_u32 s57, s57, 4096"] + dma4(regs, srd, 57, nt=True)
    o += [f"s_add_u32 {s(st)}, {s(st)}, 1"]
    return o

def l_x():
    L = []; A = L.append
    A("v_lshrrev_b32 v10, 3, v0")
    A("v_mul_u32_u24 v10, 1152, v10")
    A("v_and_b32 v11, 7, v0")
    A("v_lshrrev_b32 v12, 4, v0")
    for i in range(4):
        A(f"v_xor_b32 v13, {4*(i&1)}, v12")
        A("v_xor_b32 v13, v13, v11")
        A("v_lshl_add_u32 v13, v13, 4, v10")
        A(f"v_add_u32 {v(2+i)}, {i*(8*1152-1024)}, v13")
    A(f"s_mov_b32 s61, {XST}")
    A("s_mov_b32 s62, 0")
    def issue():
        o = []
        for q in range(3):
            o += [f"s_add_u32 m0, s61, {q*4096}", f"s_add_u32 s63, s62, {q*32*1152}"] + dma4([2,3,4,5], SX, 63)
        o += ["s_add_u32 s62, s62, 128", f"s_add_u32 s61, s61, {XSLOT}", f"s_cmp_eq_u32 s61, {XST+3*XSLOT}", f"s_cselect_b32 s61, {XST}, s61"]
        return o
    pro = L + [f"s_mov_b32 {s(S_CNT)}, 9"]
    body = issue() + [f"s_sub_u32 {s(S_CNT)}, {s(S_CNT)}, 1", f"s_cmp_gt_u32 {s(S_CNT)}, 6"]
    b0 = [f"s_cmp_lt_u32 {s(S_CNT)}, 6"]
    b0b = ["s_waitcnt vmcnt(24)", "s_barrier"]
    if OPT["coop"] == 2:
        tx = ["s_lshr_b32 s56, s2, 3", "s_and_b32 s56, s56, 3", "s_lshl_b32 s56, s56, 6", "v_add_u32 v21, s56, v0"]
        for u in range(3):
            tx += [f"v_add_u32 v22, {288+256*u}, v21", "v_mul_u32_u24 v23, 683, v22", "v_lshrrev_b32 v23, 16, v23",
                   "v_mul_u32_u24 v24, 96, v23", "v_sub_u32 v24, v22, v24", "v_mul_u32_u24 v24, 1152, v24",
                   f"v_lshl_add_u32 {v(26+u)}, v23, 7, v24", f"buffer_load_dword {v(40+u)}, {v(26+u)}, {s(SX,4)}, 0 offen{NTT()}"]
        b0b = tx + ["s_waitcnt vmcnt(27)", "s_barrier"]
    wb = ["s_barrier", "s_waitcnt vmcnt(12)", "s_barrier", f"s_cmp_gt_u32 {s(S_CNT)}, 0"]
    mid = ["s_barrier", "s_waitcnt vmcnt(0)", "s_barrier"] + kv_voffs("V", 6) + ["s_barrier", "s_barrier", "s_mov_b32 s60, 3"]
    W = OPT["kvw"]
    vt = kv_tile("V", 6, 60)
    va = vt * (W - 3)
    issued = W
    for q in range(1, 17):
        need = q - 1
        if need >= 3: va += [f"s_waitcnt vmcnt({8*(issued-1-need)})"]
        va += ["s_barrier"]
        if issued < 16: va += vt; issued += 1
    va = compress(va, "L_v", 61)
    fin = bar(9) + ["s_branch L_red"]
    code = (pro + ["L_x:"] + body + ["s_cbranch_scc1 L_x"] + b0 + ["s_cbranch_scc1 L_x1"] + b0b + ["L_x1:"] + wb + ["s_cbranch_scc1 L_x"] + mid + va[0] + fin)
    trace = pro + body * 2 + body + b0 + b0b + wb + (body + b0 + wb) * 6 + mid + va[1] + fin
    return code, trace

def compress(seq, label, cnt):
    idx = [i for i, x in enumerate(seq) if x == "s_barrier"]
    segs = [seq[a+1:b+1] for a, b in zip(idx, idx[1:])]
    best = (0, 0)
    i = 0
    while i < len(segs):
        j = i
        while j + 1 < len(segs) and segs[j+1] == segs[i]: j += 1
        if (j - i + 1) * len(segs[i]) > best[0] * (len(segs[best[1]]) if segs else 0) and j > i: best = (j - i + 1, i)
        i = j + 1
    n, i = best
    if n < 2: return seq, seq
    a = idx[i] + 1; b = idx[i + n] + 1
    body = segs[i] + [f"s_sub_u32 s{cnt}, s{cnt}, 1", f"s_cmp_gt_u32 s{cnt}, 0"]
    code = seq[:a] + [f"s_mov_b32 s{cnt}, {n}", label + ":"] + body + [f"s_cbranch_scc1 {label}"] + seq[b:]
    trace = seq[:a] + [f"s_mov_b32 s{cnt}, {n}"] + (body + [f"s_cbranch_scc1 {label}"]) * n + seq[b:]
    return code, trace

def coop_xwq():
    L = []; A = L.append
    A("s_lshr_b32 s56, s2, 3")
    A("s_lshr_b32 s57, s56, 2")
    A("s_and_b32 s56, s56, 3")
    A("v_lshrrev_b32 v20, 2, v0"); A("v_and_b32 v21, 3, v0")
    A("v_lshlrev_b32 v20, 13, v20"); A("v_lshl_add_u32 v20, v21, 7, v20")
    A("s_lshl_b32 s57, s57, 17")
    A("s_lshl_b32 s56, s56, 6"); A("v_add_u32 v21, s56, v0")
    xs = []
    for u in range(4):
        xs.append([f"v_add_u32 v22, {256*u}, v21", "v_mul_u32_u24 v23, 683, v22", "v_lshrrev_b32 v23, 16, v23",
                   "v_mul_u32_u24 v24, 96, v23", "v_sub_u32 v24, v22, v24", "v_mul_u32_u24 v24, 1152, v24",
                   f"v_lshl_add_u32 {v(26+u)}, v23, 7, v24",
                   f"buffer_load_dword {v(40+u)}, {v(26+u)}, {s(SX,4)}, 0 offen{NTT()}"])
    for u in range(5):
        A(f"buffer_load_dword {v(32+u)}, v20, {s(SWQ,4)}, s57 offen{NTT()}")
        A(f"s_add_u32 s57, s57, {128*8192}")
        if u < 4: L += xs[u]
    return L

def l_k():
    tl = []
    if OPT["tlb"]:
        tl = [f"buffer_load_dword {v(51+i)}, v50, {s(srd,4)}, 0 offen{' sc1' if srd == SWS else NTT()}" for i, srd in enumerate((SK, SV, SWO, SWS))]
    tl = ["v_mov_b32 v50, 0", "v_mov_b32 v49, 0", "v_mov_b32 v48, 0"] + tl + [f"s_lshl_b32 s50, {s(S_B)}, 11", f"s_add_u32 s50, s50, {FLOFF}",
          f"s_add_u32 {s(SFL)}, s18, s50", f"s_addc_u32 {s(SFL+1)}, s19, 0", f"s_mov_b32 {s(SFL+2)}, 2048", f"s_mov_b32 {s(SFL+3)}, 0x20000",
          f"s_mov_b32 {s(SDB)}, s16", f"s_mov_b32 {s(SDB+1)}, s17", f"s_mov_b32 {s(SDB+2)}, 256", f"s_mov_b32 {s(SDB+3)}, 0x20000",
          f"s_lshl_b32 s93, {s(S_B)}, 4", f"s_lshl_b32 s50, {s(S_J)}, 7", "v_mov_b32 v46, s50", "v_mov_b32 v47, 1"] + \
         X1([f"buffer_store_dwordx2 v[48:49], v46, {s(SFL,4)}, 0 offen sc1"])
    hs = ["s_waitcnt vmcnt(0)"] + X1([f"buffer_atomic_add v47, v50, {s(SDB,4)}, s93 offen sc1"]) + ["v_mov_b32 v22, v46"]
    pro = (coop_xwq() if OPT["coop"] == 1 else []) + tl + kv_voffs("K", 2) + kv_voffs("V", 6) + ["s_mov_b32 s60, 0", "s_mov_b32 s61, 0"]
    ek = [int(x) for x in str(OPT["ekv"]).split(".")]
    assert len(ek) == 7 and ek == sorted(ek)
    ts = []
    if OPT["coop"] == 3:
        pro += ["s_lshr_b32 s56, s2, 3", "s_lshr_b32 s57, s56, 2", "s_and_b32 s56, s56, 3",
                "v_lshrrev_b32 v20, 2, v0", "v_and_b32 v21, 3, v0", "v_lshlrev_b32 v20, 13, v20", "v_lshl_add_u32 v20, v21, 7, v20",
                "s_lshl_b32 s64, s57, 17", f"s_add_u32 s64, s64, {96*8192}", "s_lshl_b32 s65, s57, 13", "v_lshlrev_b32 v25, 7, v0",
                "s_lshl_b32 s56, s56, 6", "v_add_u32 v21, s56, v0"]
        for u in range(3):
            pro += [f"v_add_u32 v22, {288+256*u}, v21", "v_mul_u32_u24 v23, 683, v22", "v_lshrrev_b32 v23, 16, v23",
                    "v_mul_u32_u24 v24, 96, v23", "v_sub_u32 v24, v22, v24", "v_mul_u32_u24 v24, 1152, v24", f"v_lshl_add_u32 {v(26+u)}, v23, 7, v24"]
        cnt = dict(q=0, x=0, o=0)
        for n, tok in enumerate(str(OPT["ts"]).split(".")):
            kind, bi = tok[0], int(tok[1:]); u = cnt[kind]; cnt[kind] += 1
            if kind == "q": ins = [f"buffer_load_dword {v(32+n)}, v20, {s(SWQ,4)}, s64 offen{NTT()}", f"s_add_u32 s64, s64, {128*8192}"]
            if kind == "x": ins = [f"buffer_load_dword {v(32+n)}, {v(26+u)}, {s(SX,4)}, 0 offen{NTT()}"]
            if kind == "o": ins = [f"buffer_load_dword {v(32+n)}, v25, {s(SWO,4)}, s65 offen", f"s_add_u32 s65, s65, {512*128}"]
            ts.append((bi, ins))
        assert cnt["q"] <= 4 and cnt["x"] <= 3 and cnt["o"] <= 5
    early = []
    clr = {}
    if OPT["clr"]:
        c0, per = [int(x) for x in str(OPT["clr"]).split(".")]
        pro += ["v_lshlrev_b32 v60, 4, v0", "s_mov_b32 s66, 0"] + [f"v_mov_b32 {v(56+i)}, -1" for i in range(4)]
        n = 0; bi = c0
        while n < 108:
            k = min(per, 108 - n)
            clr[bi] = ["s_waitcnt vmcnt(40)"] + [f"buffer_store_dwordx4 v[56:59], v60, {s(SWS,4)}, s66 offen offset:{(i&3)*1024} sc1" + ("\n    s_add_u32 s66, s66, 4096" if (i & 3) == 3 else "") for i in range(n, n + k)]
            n += k; bi += 1
        assert bi <= 15
    for bi in range(-1, 18):
        if bi >= 0: early += ["s_barrier"]
        early += clr.get(bi, [])
        if bi == 8: early += hs
        for b2, ins in ts:
            if b2 == bi: early += ins
        for n, e in enumerate(ek):
            if e == bi: early += (["s_waitcnt vmcnt(40)"] if n >= 5 else []) + kv_tile("V" if n & 1 else "K", 6 if n & 1 else 2, 61 if n & 1 else 60)
    W = OPT["kvw"]
    kb = kv_tile("K", 2, 60)
    def pos(kind, t): return (2 * t + (kind == "V")) if t < 3 or (t == 3 and kind == "K") else 3 + t
    seq = ["s_waitcnt vmcnt(48)", "s_barrier"]
    issued = 4
    def issue():
        nonlocal issued
        o = []
        if (3 + issued + 1 - lastw - 1) * 8 > 63: o = ["s_waitcnt vmcnt(48)"]
        issued += 1
        return o + kb
    lastw = 0
    for _ in range(W - 3): seq += issue()
    for q in range(1, 17):
        need = max(pos("K", min(q, 15)), pos("V", q - 1) if q - 1 < 3 else 0)
        n = min(8 * (3 + issued - 1 - need), 56)
        seq += [f"s_waitcnt vmcnt({n})", "s_barrier"]
        lastw = 3 + issued - 1 - n // 8
        if issued < 16: seq += issue()
    kc, kt = compress(seq, "L_k", 62)
    fin = bar(1) + ["v_mov_b32 v21, 1", "v_and_b32 v24, 15, v0", "v_lshlrev_b32 v24, 7, v24",
                    f"buffer_load_dword v20, v50, {s(SDB,4)}, s93 offen sc1"] + bar(1) + red_setup() + bar(7) + ["s_branch L_poll"]
    code = pro + early + kc + fin
    trace = pro + early + kt + fin
    return code, trace

def build():
    pro = prologue()
    cs = c_setup(); qc, qt = c_qproj(); qv = c_qcvt(); ac, at = c_attn(); on = c_onorm(); oc, ot = c_oproj(); fi, fw, fp = c_finish()
    wqc, wqt = l_wq(); xc, xt = l_x(); kc, kt = l_k()
    disp = ["L_loaders:", f"s_cmp_eq_u32 {s(S_W)}, 6", "s_cbranch_scc1 L_ldx", f"s_cmp_eq_u32 {s(S_W)}, 7", "s_cbranch_scc1 L_ldk"]
    code = pro + cs + qc + qv + ac + on + oc + fi + disp + wqc + ["L_ldx:"] + xc + ["L_ldk:"] + kc + ["L_end:", "s_endpgm"]
    if OPT["check"]:
        tot = 0; nb = set()
        for nm, tr in (("compute", pro + cs + qt + qv + at + on + ot + fw), ("wq", pro + wqt + fw), ("x", pro + xt + fw), ("k", pro + kt + fp)):
            e, b = chk.check(tr, nm)
            tot += e
            if nm != "red": nb.add(b)
        assert len(nb) == 1, f"barrier mismatch {nb}"
    names = [x.split("; stamp ")[1] for x in pro + cs + qt + qv + at + on + ot + fw if "; stamp " in x]
    assert len(names) <= 64
    def fmt(L): return "\n".join(x if x.endswith(":") else "    " + x for x in L)
    def desc(name, vg, y):
        return f""".amdhsa_kernel {name}
  .amdhsa_next_free_vgpr {vg}
  .amdhsa_next_free_sgpr 102
  .amdhsa_accum_offset {vg}
  .amdhsa_group_segment_fixed_size 0
  .amdhsa_kernarg_size 64
  .amdhsa_user_sgpr_count 2
  .amdhsa_user_sgpr_kernarg_segment_ptr 1
  .amdhsa_system_sgpr_workgroup_id_x 1
""" + ("  .amdhsa_system_sgpr_workgroup_id_y 1\n" if y else "") + ".end_amdhsa_kernel\n"
    return f"""; Fused GQA block: Q-proj + attention + O-proj partials per (batch, kv head) workgroup, in-launch reduction.
; @launch grid=(256,1,1) block=(512,1,1) lds=163840
.amdgcn_target "amdgcn-amd-amdhsa--gfx950"
.text
.globl {KMAIN}
.p2align 8
.type {KMAIN},@function
{KMAIN}:
{fmt(code)}
.section .rodata,"a"
.p2align 6
{desc(KMAIN, 256, False)}"""

if __name__ == "__main__":
    out = sys.argv[1]
    for a in sys.argv[2:]:
        k, val = a.split("=")
        OPT[k] = int(val) if val.lstrip("-").isdigit() else val
    OPT["stf"] = OPT["stf"].replace("_", " ")
    if OPT["nodma"]: OPT["nodma"] = [dict(x=SX, k=SK, v=SV, q=SWQ, o=SWO)[c] for c in OPT["nodma"]]
    open(out, "w").write(build())
    import subprocess
    r = subprocess.run(["clang", "-x", "assembler", "-target", "amdgcn-amd-amdhsa", "-mcpu=gfx950", "-c", out, "-o", "gen_check.o"], capture_output=True, text=True)
    if r.returncode: print("ASM ERROR\n" + "\n".join(r.stderr.split("\n")[:12]))
    else:
        r = subprocess.run(["llvm-readelf", "-S", "gen_check.o"], capture_output=True, text=True)
        r2 = subprocess.run(["python3", "cdna_unwritten_srd_check.py", out], capture_output=True, text=True)
        print("srd check rc", r2.returncode, (r2.stdout + r2.stderr).strip()[:1500])
        print(out, "text bytes:", [int(l.split()[6], 16) for l in r.stdout.split("\n") if " .text" in l])
```

```python
import sys, struct, math
sys.path.insert(0, "work")
import chk

KMAIN = "standalone__gqa_block_cached__near_ridge_kernel"
KRED = "gqa_reduce_kernel"
OPT = dict(stamps=0, dbg="", rot=1, check=1, nodma=(), wgsel=0, fine=0, coop=1, ekv='14.15.15.16.16.17.17', wop='8.10.12', wod='14.16.17', kvw=4, clr='', tlb=1, ntt=0, ts='', ntd='', ntr=0, wsoff=0, stf='_sc1', lim=600, dry=0)

def f2u(x): return struct.unpack("<I", struct.pack("<f", x))[0]
def v(a, n=1): return f"v{a}" if n == 1 else f"v[{a}:{a+n-1}]"
def s(a, n=1): return f"s{a}" if n == 1 else f"s[{a}:{a+n-1}]"
K1 = 1024
QST = 56 * K1
WQSLOT = 16416
GOFF = [0, 4104, 8208, 12312]
XST = QST + 4 * WQSLOT
XSLOT = 12288
assert XST + 3 * XSLOT <= 160 * K1
WOS = [128 * K1, 0, 96 * K1]
OXB = 32 * K1
LFL = 80 * K1
def nextslot(r):
    return [f"s_add_u32 {r}, {r}, {32*K1}", f"s_cmp_eq_u32 {r}, {32*K1}", f"s_cselect_b32 {r}, {96*K1}, {r}", f"s_cmp_eq_u32 {r}, {160*K1}", f"s_cselect_b32 {r}, 0, {r}"]
SX, SK, SV, SWQ, SWO, SWS = 24, 28, 32, 36, 40, 44
S_W, S_B, S_J, S_ROT = 20, 21, 22, 23
S_CNT, S_D, S_T0, S_T1, S_T2, S_T3, S_T4, S_T5 = 48, 49, 50, 51, 52, 53, 54, 55
S_STAMP = 64
QACC = 16
def qacc(T, r): return QACC + (T * 3 + r) * 4
FB = [112, 156]
def fwq(b, T): return FB[b] + 4 * T
def fx(b, r): return FB[b] + 32 + 4 * r
def qf(sx, r): return 208 + (sx * 3 + r) * 4
POOL = 16
BX, BZ, BY, LS, ONES, KAD, VAD = 48, 60, 72, 84, 96, 100, 104
def oacc(T, r): return 112 + (T * 3 + r) * 4
WQAD = 2
XAD = 6
XADB = 8
def mfma(d, a, b, c):
    cs = "0" if c is None else v(c, 4)
    return f"v_mfma_f32_16x16x32_bf16 {v(d,4)}, {v(a,4)}, {v(b,4)}, {cs}"
def trd(d, ad, off): return f"ds_read_b64_tr_b16 {v(d,2)}, {v(ad)} offset:{off}"
def rd128(d, ad, off): return f"ds_read_b128 {v(d,4)}, {v(ad)} offset:{off}"
def cvt(d, a, b): return f"v_cvt_pk_bf16_f32 {v(d)}, {v(a)}, {v(b)}"

def stamp(name="", first=False, fine=False):
    if not OPT["stamps"] or (fine and not OPT["fine"]): return []
    op = "s_memtime" if OPT["stamps"] == 2 else "s_memrealtime"
    pre = ["s_mov_b32 m0, 0"] if first else ["v_writelane_b32 v1, s96, m0", "s_add_u32 m0, m0, 1"]
    return pre + [f"{op} s[96:97]  ; stamp {name}"]

def weave(mf, gaps, pre=None):
    out = []
    for i, m in enumerate(mf):
        if pre and i in pre: out += pre[i]
        out.append(m)
        out += gaps.get(i, [])
    return out

def prologue():
    L = []
    A = L.append
    A("s_cmp_ge_u32 s2, 256")
    A("s_cbranch_scc1 L_end")
    A("s_load_dwordx16 s[4:19], s[0:1], 0")
    L += stamp("start", first=True)
    A("v_lshrrev_b32 v2, 6, v0")
    A("v_and_b32 v0, 63, v0")
    A("s_and_b32 s50, s2, 7")
    A("s_lshr_b32 s51, s2, 3")
    A(f"v_readfirstlane_b32 {s(S_W)}, v2")
    A("s_and_b32 s52, s50, 3")
    A("s_lshl_b32 s52, s52, 2")
    A("s_and_b32 s53, s51, 3")
    A(f"s_add_u32 {s(S_J)}, s52, s53")
    A("s_lshr_b32 s52, s50, 2")
    A("s_lshl_b32 s52, s52, 3")
    A("s_lshr_b32 s53, s51, 2")
    A(f"s_add_u32 {s(S_B)}, s52, s53")
    if OPT["rot"]:
        A(f"s_lshl_b32 {s(S_ROT)}, s51, 1")
        A(f"s_and_b32 {s(S_ROT)}, {s(S_ROT)}, 15")
    else:
        A(f"s_mov_b32 {s(S_ROT)}, 0")
    A(f"s_lshl_b32 s54, {s(S_B)}, 4")
    A(f"s_add_u32 s54, s54, {s(S_J)}")
    A(f"s_mul_i32 s50, {s(S_B)}, 110592")
    A("s_lshl_b32 s51, s54, 17")
    A(f"s_lshl_b32 s52, {s(S_J)}, 9")
    A(f"s_mul_i32 s53, {s(S_J)}, {256*1152}")
    A("s_mul_i32 s55, s54, 110592")
    if OPT["wsoff"]: A(f"s_add_u32 s55, s55, {OPT['wsoff'] << 20}")
    for srd, nrec in ((SX, 110592), (SK, 131072), (SV, 131072), (SWQ, 575 * 8192 + 512), (SWO, 256 * 1152), (SWS, 110592)):
        A(f"s_mov_b32 {s(srd+2)}, {nrec}")
        A(f"s_mov_b32 {s(srd+3)}, 0x20000")
    A("s_waitcnt lgkmcnt(0)")
    for srd, p, o in ((SX, 4, 50), (SK, 6, 51), (SV, 8, 51), (SWQ, 10, 52), (SWO, 12, 53), (SWS, 18, 55)):
        A(f"s_add_u32 {s(srd)}, {s(p)}, {s(o)}")
        A(f"s_addc_u32 {s(srd+1)}, {s(p+1)}, 0")
    A(f"s_cmp_ge_u32 {s(S_W)}, 4")
    A("s_cbranch_scc1 L_loaders")
    return L

def c_setup():
    L = []; A = L.append
    A("v_and_b32 v10, 15, v0")
    A("v_lshrrev_b32 v11, 4, v0")
    A("v_bfe_u32 v12, v0, 2, 2")
    A("v_and_b32 v13, 3, v0")
    A(f"s_lshr_b32 s50, {s(S_W)}, 1")
    A(f"s_and_b32 s51, {s(S_W)}, 1")
    A("v_mul_u32_u24 v14, 4104, v11")
    A("v_lshl_add_u32 v14, v12, 9, v14")
    A("v_lshl_add_u32 v14, v13, 4, v14")
    A("s_lshl_b32 s52, s50, 8")
    A(f"s_add_u32 s52, s52, {QST}")
    A("v_add_u32 v14, s52, v14")
    for sx in range(4):
        A(f"v_xor_b32 v15, {sx}, v12")
        A(f"v_lshl_add_u32 {v(WQAD+sx)}, v15, 6, v14")
    A("s_mul_i32 s52, s51, 6144")
    A(f"s_add_u32 s52, s52, {XST}")
    A("v_lshlrev_b32 v14, 7, v10")
    A("v_add_u32 v14, s52, v14")
    A("v_lshrrev_b32 v15, 1, v10")
    A("v_xor_b32 v15, v15, v11")
    A(f"v_lshl_add_u32 {v(XADB)}, v15, 4, v14")
    A(f"v_xor_b32 {v(XADB+1)}, 64, {v(XADB)}") if (XST % 128 == 0) else None
    assert XST % 128 == 0
    A(f"v_mov_b32 {v(XAD)}, {v(XADB)}")
    A(f"v_mov_b32 {v(XAD+1)}, {v(XADB+1)}")
    A(f"s_mov_b32 {s(S_D)}, {2*WQSLOT}")
    A(f"s_mov_b32 {s(S_T0)}, 0")
    A(f"s_mov_b32 {s(S_CNT)}, 9")
    return L

def q_reads(buf, wqoff, xad):
    R = []
    for r in range(3): R.append(rd128(fx(buf, r), xad, r * 2048))
    for T in range(8):
        sx, p = T >> 1, T & 1
        for h in range(2):
            R.append(trd(fwq(buf, T) + 2 * h, WQAD + sx, wqoff + h * 2048 + 8 * p))
    return R

def q_mfmas(buf, first=False):
    return [mfma(qacc(T, r), fwq(buf, T), fx(buf, r), None if first else qacc(T, r)) for T in range(8) for r in range(3)]

def q_step(buf, reads, extra=None):
    gaps = {}
    for i, r in enumerate(reads): gaps.setdefault(i, []).append(r)
    if extra:
        for k, x in extra.items(): gaps.setdefault(k, []).extend(x)
    return ["s_waitcnt lgkmcnt(0)", "s_barrier"] + weave(q_mfmas(buf), gaps)

def c_qproj():
    pro = [f"v_mov_b32 {v(QACC+i)}, 0" for i in range(96)]
    pro += ["s_barrier"] + stamp("B0") + q_reads(0, 0, XAD)
    exE = {19: [f"v_add_u32 {v(WQAD)}, {s(S_D)}, {v(WQAD)}", f"v_add_u32 {v(WQAD+1)}, {s(S_D)}, {v(WQAD+1)}"],
           20: [f"v_add_u32 {v(WQAD+2)}, {s(S_D)}, {v(WQAD+2)}", f"v_add_u32 {v(WQAD+3)}, {s(S_D)}, {v(WQAD+3)}"],
           3: [f"s_add_u32 {s(S_T0)}, {s(S_T0)}, {XSLOT}"],
           4: [f"s_cmp_eq_u32 {s(S_T0)}, {3*XSLOT}"],
           5: [f"s_cselect_b32 {s(S_T0)}, 0, {s(S_T0)}"],
           21: [f"v_add_u32 {v(XAD)}, {s(S_T0)}, {v(XADB)}", f"v_add_u32 {v(XAD+1)}, {s(S_T0)}, {v(XADB+1)}"],
           22: [f"s_sub_u32 {s(S_D)}, 0, {s(S_D)}", f"s_sub_u32 {s(S_CNT)}, {s(S_CNT)}, 1"],
           23: [f"s_cmp_eq_u32 {s(S_CNT)}, 0"]}
    E = q_step(0, q_reads(1, WQSLOT, XAD + 1), exE)
    E = E[:2] + stamp("q", fine=True) + E[2:]
    O = q_step(1, q_reads(0, 0, XAD))
    z = [f"v_mov_b32 {v(112+i)}, 0" for i in range(44)]
    P17 = q_step(1, [], {i: z[2*i:2*i+2] for i in range(22)})
    code = pro + ["L_q:"] + E + ["s_cbranch_scc1 L_q17"] + O + ["s_branch L_q", "L_q17:"] + P17
    trace = pro + (E + ["s_cbranch_scc1 L_q17"] + O + ["s_branch L_q"]) * 8 + E + ["s_cbranch_scc1 L_q17"] + P17
    return code, trace

def c_qcvt():
    L = []; A = L.append
    L += stamp("qproj done")
    sc = (128 ** -0.5) * math.log2(math.e)
    A(f"s_mov_b32 s50, 0x{f2u(sc):08x}")
    A("s_mov_b32 s51, s50")
    for i in range(44, 96): A(f"v_mov_b32 {v(112+i)}, 0")
    order = [6, 7, 0, 1, 2, 3, 4, 5]
    def conv(T):
        o = []
        for r in range(3):
            a = qacc(T, r)
            o.append(f"v_pk_mul_f32 {v(a,2)}, {v(a,2)}, s[50:51]")
            o.append(f"v_pk_mul_f32 {v(a+2,2)}, {v(a+2,2)}, s[50:51]")
        for r in range(3):
            a = qacc(T, r); d = qf(T >> 1, r) + 2 * (T & 1)
            o.append(cvt(d, a, a + 1)); o.append(cvt(d + 1, a + 2, a + 3))
        return o
    for T in order[:5]: L += conv(T)
    for sx in range(4):
        A(f"v_xor_b32 v14, {4*sx}, v11")
        A("v_xor_b32 v14, v14, v10")
        A("v_lshlrev_b32 v14, 4, v14")
        A(f"v_lshl_add_u32 {v(KAD+sx)}, v10, 8, v14")
    for f in range(8): A(rd128(POOL + 4 * f, KAD + (f & 3), (f >> 2) * 4096))
    A("v_lshl_add_u32 v14, v11, 2, v12")
    A("v_lshlrev_b32 v15, 8, v14")
    A("v_lshl_add_u32 v15, v13, 3, v15")
    A("v_add_u32 v15, 8192, v15")
    A("v_and_b32 v14, 7, v14")
    for T in range(8):
        A(f"v_xor_b32 v9, {T}, v14")
        A(f"v_lshl_add_u32 {v(VAD+T)}, v9, 5, v15")
    for T in order[5:]: L += conv(T)
    for i in range(12): A(f"v_mov_b32 {v(LS+i)}, 0")
    for i in range(4): A(f"v_mov_b32 {v(ONES+i)}, 0x3f803f80")
    A(f"s_mov_b32 {s(S_D)}, {32*K1}")
    A(f"s_mov_b32 {s(S_CNT)}, 8")
    return L

E0G = [16, 19, 22, 25, 27, 28, 30, 31, 33, 34, 36, 37]
E1G = [39, 40, 42, 43, 45, 46, 48, 49]
E1N = [0, 1, 4, 7]
def ex(r): return f"v_exp_f32 {v(r)}, {v(r)}"

def half(odd, qk=True, pv=True, extra=()):
    cur = BZ if odd else BX
    prv = BX if odd else BZ
    off = 0 if odd else 16 * K1
    mf = []
    for f in range(8):
        kt, sx = f >> 2, f & 3
        for r in range(3):
            d = (cur if kt == 0 else BY) + 4 * r
            mf.append(mfma(d, POOL + 4 * f, qf(sx, r), None if sx == 0 else d))
    for T in range(8):
        for r in range(3):
            mf.append(mfma(oacc(T, r), POOL + 4 * T, prv + 4 * r, oacc(T, r)))
    for r in range(3): mf.append(mfma(LS + 4 * r, ONES, prv + 4 * r, LS + 4 * r))
    G = {i: [] for i in range(51)}
    if pv:
        for T in range(8):
            G[3*T+2].append(trd(POOL + 4*T, VAD + T, off))
            G[3*T+3].append(trd(POOL + 4*T + 2, VAD + T, off + 4096))
        for i, g in enumerate(E1N): G[g].append(ex(BY + 8 + i))
        G[2].append(cvt(prv + 8 + 2, BY + 8, BY + 9))
        G[8].append(cvt(prv + 8 + 3, BY + 10, BY + 11))
    if qk:
        for f in range(8): G[24 + 3*f + 2].append(rd128(POOL + 4*f, KAD + (f & 3), off + (f >> 2) * 4096))
        for i, g in enumerate(E0G): G[g].append(ex(cur + i))
        for r, (g0, g1) in enumerate([(20, 26), (29, 32), (35, 38)]):
            G[g0].append(cvt(cur + 4*r, cur + 4*r, cur + 4*r + 1))
            G[g1].append(cvt(cur + 4*r + 1, cur + 4*r + 2, cur + 4*r + 3))
        for i, g in enumerate(E1G): G[g].append(ex(BY + i))
        for r, (g0, g1) in enumerate([(41, 44), (47, 50)]):
            G[g0].append(cvt(cur + 4*r + 2, BY + 4*r, BY + 4*r + 1))
            G[g1].append(cvt(cur + 4*r + 3, BY + 4*r + 2, BY + 4*r + 3))
    def xr(r): return f"v_xor_b32 {v(r)}, {s(S_D)}, {v(r)}"
    if qk and pv:
        if odd:
            G[10] += [xr(KAD), xr(KAD + 1)]; G[13] += [xr(KAD + 2), xr(KAD + 3)]
            G[17] += [f"s_sub_u32 {s(S_CNT)}, {s(S_CNT)}, 1"]
            G[50] += [f"s_cmp_eq_u32 {s(S_CNT)}, 0"]
        else:
            G[10] += [xr(VAD), xr(VAD + 1)]; G[13] += [xr(VAD + 2), xr(VAD + 3)]
            G[17] += [xr(VAD + 4)]; G[21] += [xr(VAD + 5)]; G[23] += [xr(VAD + 6)]
            G[50] += [xr(VAD + 7), f"s_xor_b32 {s(S_D)}, {s(S_D)}, {64*K1}"]
    pre = {0: ["s_waitcnt lgkmcnt(4)"], 12: ["s_waitcnt lgkmcnt(7)"], 24: ["s_waitcnt lgkmcnt(7)", "s_barrier"], 36: ["s_waitcnt lgkmcnt(4)"]}
    if qk and pv: return weave(mf, G, pre)
    out = []
    if qk:
        pre = {0: ["s_waitcnt lgkmcnt(4)"], 12: ["s_waitcnt lgkmcnt(0)"]}
        assert len(extra) <= 32
        for i, x in enumerate(extra): G[i // 2].append(x)
        out = weave(mf[:24], G, pre) + ["s_barrier"]
        rest = []
        for g in range(24, 51): rest += G[g]
        out += [x for x in rest if x.startswith("ds_")]
        va = [x for x in rest if not x.startswith("ds_")]
        for a, b in zip(va, va[1:] + [""]):
            out.append(a)
            if a.startswith("v_exp") and b.startswith("v_cvt"): out.append("s_nop 0")
        return out
    out = ["s_waitcnt lgkmcnt(0)"]
    rest = []
    for g in range(0, 25): rest += G[g]
    out += [x for x in rest if x.startswith("ds_")]
    va = [x for x in rest if not x.startswith("ds_")]
    for a, b in zip(va, va[1:] + [""]):
        out.append(a)
        if a.startswith("v_exp") and b.startswith("v_cvt"): out.append("s_nop 0")
    out += ["s_nop 1"] + mf[48:51]
    return out, mf[24:48]

def c_attn():
    P = stamp("attn start") + half(False, pv=False, extra=o_setup())
    B = stamp("a", fine=True) + half(True); Ah = half(False)
    E = []
    code = P + ["L_a:"] + B + ["s_cbranch_scc1 L_ae"] + Ah + ["s_branch L_a", "L_ae:"] + E
    trace = P + (B + ["s_cbranch_scc1 L_ae"] + Ah + ["s_branch L_a"]) * 7 + B + ["s_cbranch_scc1 L_ae"] + E
    return code, trace

WA = 2
XW, XR, STV = 6, 7, 8
def OFo(sp, r): return 208 + (sp * 3 + r) * 4
def OFx(sp, r): return 160 + (sp * 3 + r) * 4
def OF(i, r): return OFo(i, r) if i < 4 else OFx(i - 4, r)
def acc(b, c, r): return 112 + 24 * b + (c * 3 + r) * 4
RG = [48, 72, 96, 104]
def PKR(r): return 16 + 4 * r
def o_setup():
    L = []; A = L.append
    A(f"s_lshr_b32 s50, {s(S_W)}, 1")
    A(f"v_lshlrev_b32 {v(STV)}, 4, v0")
    A(f"s_mul_i32 s52, {s(S_W)}, {12*K1}")
    A(f"v_bfe_u32 {v(WA+1)}, v0, 3, 2")
    A(f"s_add_u32 s52, s52, {OXB}")
    A(f"v_add_u32 {v(XW)}, s52, {v(STV)}")
    A(f"s_xor_b32 s53, {s(S_W)}, 2")
    A(f"s_mul_i32 s53, s53, {12*K1}")
    A(f"s_add_u32 s53, s53, {OXB}")
    A(f"v_add_u32 {v(XR)}, s53, {v(STV)}")
    A(f"s_and_b32 s51, {s(S_W)}, 2")
    A(f"v_xor_b32 {v(WA+1)}, s51, {v(WA+1)}")
    A(f"v_lshrrev_b32 {v(WA+2)}, 2, v0")
    A(f"v_lshlrev_b32 {v(WA+1)}, 5, {v(WA+1)}")
    A(f"v_lshl_add_u32 {v(WA+1)}, {v(WA+2)}, 7, {v(WA+1)}")
    A(f"v_and_b32 {v(WA+2)}, 3, v0")
    A(f"v_lshl_add_u32 {v(WA+1)}, {v(WA+2)}, 3, {v(WA+1)}")
    A("s_lshl_b32 s52, s50, 14")
    A(f"s_add_u32 s52, s52, {WOS[0]}")
    A(f"v_add_u32 {v(WA)}, s52, {v(WA+1)}")
    A(f"v_xor_b32 {v(WA+1)}, 32, {v(WA)}")
    A(f"v_xor_b32 {v(WA+2)}, 0x4000, {v(WA)}")
    A(f"v_xor_b32 {v(WA+3)}, 0x4020, {v(WA)}")
    A(f"s_and_b32 s51, {s(S_W)}, 1")
    A("s_lshl_b32 s51, s51, 1")
    A("s_add_u32 s51, s51, s50")
    A(f"s_mul_i32 {s(S_ST)}, s51, 3072")
    A(f"s_mov_b32 {s(S_SL)}, {WOS[0]}")
    return L
S_ST, S_SL, S_DL = 57, 58, 59
def ogrp(b, i): return [mfma(acc(b, c, r), RG[i & 3] + 4 * c, OF(i, r), None if i == 0 else acc(b, c, r)) for c in range(2) for r in range(3)]
def ords(i):
    i &= 7
    return [trd(RG[i & 3] + 4 * c + 2 * h, WA + 2 * (i >> 2) + c, (i & 3) * 4096 + h * 2048) for c in range(2) for h in range(2)]
def spread(items, gaps, G):
    n = len(items); k = len(gaps)
    for j, g in enumerate(gaps): G.setdefault(g, []).extend(items[j * n // k:(j + 1) * n // k])

def slot_adv():
    sa = [f"s_mov_b32 {s(S_DL)}, {s(S_SL)}"] + nextslot(s(S_SL)) + [f"s_sub_u32 {s(S_DL)}, {s(S_SL)}, {s(S_DL)}"]
    va = [f"v_add_u32 {v(WA+i)}, {s(S_DL)}, {v(WA+i)}" for i in range(4)]
    return sa, va

def c_epi():
    head, pv = half(False, qk=False)
    L = list(head)
    chkv = [f"v_min3_f32 v100, {v(LS)}, {v(LS+4)}, {v(LS+8)}", f"v_max3_f32 v101, {v(LS)}, {v(LS+4)}, {v(LS+8)}",
            f"v_cmp_gt_f32 vcc, 0x{f2u(2.0**-40):08x}, v100", "s_mov_b64 s[50:51], vcc",
            f"v_cmp_lt_f32 vcc, 0x{f2u(2.0**40):08x}, v101", "s_or_b64 vcc, vcc, s[50:51]"]
    L += weave(pv[0:6], {0: [f"s_mov_b32 {s(S_CNT)}, 4"], 4: ["s_nop 1"], 5: chkv}, {0: ["s_waitcnt lgkmcnt(12)", "s_nop 0"]})
    L += ["s_cbranch_scc1 L_slow", "L_norm:"] + stamp("attn done")
    L += [f"v_rcp_f32 {v(LS+4*r)}, {v(LS+4*r)}" for r in range(3)]
    def norm(sp):
        o = []
        for p in range(2):
            for r in range(3):
                a = oacc(2 * sp + p, r)
                o += [f"v_mul_f32 {v(a+i)}, {v(LS+4*r)}, {v(a+i)}" for i in range(4)]
                o += [cvt(OFo(sp, r) + 2 * p, a, a + 1), cvt(OFo(sp, r) + 2 * p + 1, a + 2, a + 3)]
                if p == 1: o += [f"ds_write_b128 {v(XW)}, {v(OFo(sp, r),4)} offset:{(sp*3+r)*K1}"]
        return o
    waits = {1: "s_waitcnt lgkmcnt(8)", 2: "s_waitcnt lgkmcnt(11)", 3: "s_waitcnt lgkmcnt(14)"}
    for sp in range(4):
        mf = pv[6*sp+6:6*sp+12] if sp < 3 else ogrp(0, 0)
        G = {}
        rr = ords(sp)
        for i in range(4): G[i] = [rr[i]]
        spread(norm(sp), range(6), G)
        L += weave(mf, G, {0: [waits[sp + 1]]} if sp < 3 else {0: ["s_waitcnt lgkmcnt(14)"]})
    L += ["s_waitcnt lgkmcnt(0)", "s_barrier"] + stamp("OX")
    sa, va = slot_adv()
    xr = [rd128(OFx(sp, r), XR, (sp * 3 + r) * K1) for sp in range(4) for r in range(3)]
    for i in range(1, 8):
        rr = ords(i + 3); G = {}; pre = {}
        if i <= 3:
            x = xr[4*(i-1):4*i]
            G = {0: [x[0]], 1: [x[1], rr[0]], 2: [x[2]], 3: [rr[1], x[3]], 4: [rr[2]], 5: [rr[3]]}
            if i == 3: spread(sa, range(6), G)
        elif i == 4:
            G = {k: [rr[k]] for k in range(4)}; G[4] = va[:2]; G[5] = va[2:]
            pre = {0: ["s_waitcnt lgkmcnt(8)"]}
        elif i == 5:
            G = {1: ["s_waitcnt lgkmcnt(0)", "s_barrier"]}
            for k in range(4): G[k + 2] = [rr[k]]
            pre = {0: ["s_waitcnt lgkmcnt(4)"]}
        else: G = {k: [rr[k]] for k in range(4)}
        L += weave(ogrp(0, i), G, pre)
    return L

def c_slow():
    MX, KV_, VV_ = 100, 103, 104
    def kload(): return [f"buffer_load_dwordx4 {v(POOL+4*f,4)}, {v(KV_)}, {s(SK,4)}, s{52+(f>>2)} offen offset:{64*(f&3)}" for f in range(8)]
    def qk():
        o = ["s_waitcnt vmcnt(0)"]
        for f in range(8):
            for r in range(3):
                d = (BX if f < 4 else BY) + 4 * r
                o.append(mfma(d, POOL + 4 * f, qf(f & 3, r), None if (f & 3) == 0 else d))
        return o
    nxt = ["s_add_u32 s52, s52, 8192", "s_add_u32 s53, s53, 8192", "s_cmp_lt_u32 s52, 131072"]
    pro = ["L_slow:", "s_waitcnt lgkmcnt(0)", "v_and_b32 v10, 15, v0", "v_lshrrev_b32 v11, 4, v0",
           f"v_lshlrev_b32 {v(KV_)}, 4, v11", f"v_lshl_add_u32 {v(KV_)}, v10, 8, {v(KV_)}",
           f"v_lshlrev_b32 {v(VV_)}, 1, v10", f"v_lshl_add_u32 {v(VV_)}, v11, 10, {v(VV_)}",
           "s_mov_b32 s52, 0", "s_mov_b32 s53, 4096", "s_nop 3"]
    pro += [f"v_mov_b32 {v(MX+r)}, 0xff800000" for r in range(3)]
    pro += [f"v_mov_b32 {v(112+i)}, 0" for i in range(96)] + [f"v_mov_b32 {v(LS+i)}, 0" for i in range(12)]
    b1 = kload() + qk() + ["s_nop 7"]
    for r in range(3):
        for B in (BX, BY):
            b1 += [f"v_max3_f32 {v(MX+r)}, {v(B+4*r)}, {v(B+4*r+1)}, {v(MX+r)}", f"v_max3_f32 {v(MX+r)}, {v(B+4*r+2)}, {v(B+4*r+3)}, {v(MX+r)}"]
    b1 += nxt
    mid = []
    for sw in ("v_permlane32_swap_b32", "v_permlane16_swap_b32"):
        mid += [f"v_mov_b32 {v(BZ+r)}, {v(MX+r)}" for r in range(3)] + ["s_nop 1"]
        mid += [f"{sw} {v(BZ+r)}, {v(MX+r)}" for r in range(3)] + ["s_nop 1"]
        mid += [f"v_max_f32 {v(MX+r)}, {v(BZ+r)}, {v(MX+r)}" for r in range(3)]
    mid += ["s_mov_b32 s52, 0", "s_mov_b32 s53, 4096"]
    def vload(hf):
        return [f"buffer_load_ushort {v(POOL + 16*(e&1) + 4*Tq + (e>>1))}, {v(VV_)}, {s(SV,4)}, s{52+(e>>2)} offen offset:{(e&3)*256+(4*hf+Tq)*32}"
                for Tq in range(4) for e in range(8)]
    def pv(hf):
        o = ["s_waitcnt vmcnt(0)"] + [f"v_lshl_or_b32 {v(POOL+i)}, {v(POOL+16+i)}, 16, {v(POOL+i)}" for i in range(16)] + ["s_nop 1"]
        o += [mfma(oacc(4*hf+Tq, r), POOL + 4*Tq, BZ + 4*r, oacc(4*hf+Tq, r)) for Tq in range(4) for r in range(3)]
        return o + ["s_nop 7"]
    b2 = kload() + qk() + ["s_nop 7"] + vload(0)
    for r in range(3):
        for B in (BX, BY):
            b2 += [f"v_sub_f32 {v(B+4*r+i)}, {v(B+4*r+i)}, {v(MX+r)}" for i in range(4)]
    for B in (BX, BY): b2 += [ex(B + i) for i in range(12)]
    b2 += ["s_nop 0"]
    for r in range(3):
        b2 += [cvt(BZ+4*r, BX+4*r, BX+4*r+1), cvt(BZ+4*r+1, BX+4*r+2, BX+4*r+3), cvt(BZ+4*r+2, BY+4*r, BY+4*r+1), cvt(BZ+4*r+3, BY+4*r+2, BY+4*r+3)]
    b2 += ["s_nop 1"] + [mfma(LS+4*r, ONES, BZ+4*r, LS+4*r) for r in range(3)]
    b2 += pv(0) + vload(1) + pv(1) + nxt
    fin = [f"v_mov_b32 {v(POOL+i)}, 0" for i in range(32)] + [f"v_mov_b32 {v(BZ+i)}, 0" for i in range(12)] + ["s_branch L_norm"]
    code = pro + ["L_s1:"] + b1 + ["s_cbranch_scc1 L_s1"] + mid + ["L_s2:"] + b2 + ["s_cbranch_scc1 L_s2"] + fin
    trace = pro + b1 * 2 + mid + b2 * 2
    return code, trace

def c_oproj():
    def cv(b, r): return [cvt(PKR(r) + 2*c + k, acc(b, c, r) + 2*k, acc(b, c, r) + 2*k + 1) for c in range(2) for k in range(2)]
    def st(r): return f"buffer_store_dwordx4 {v(PKR(r),4)}, {v(STV)}, {s(SWS,4)}, {s(S_ST)} offen offset:{r*1024}{OPT['stf']}"
    sa, va = slot_adv()
    def step(b):
        o = stamp("o", fine=True)
        for i in range(8):
            rr = ords(i + 3)
            G = {k: [rr[k]] for k in range(4)}
            pre = {0: ["s_waitcnt lgkmcnt(8)"]} if i <= 5 else {}
            if i < 3:
                c = cv(1 - b, i)
                for k in range(4): G.setdefault(k + 1, []).append(c[k])
                G[5] = [st(i)]
            if i == 3:
                spread([f"s_add_u32 {s(S_ST)}, {s(S_ST)}, {4*3072}"] + sa, range(6), G)
            if i == 4:
                G[4] = va[:2]; G[5] = va[2:]
                if b == 0: G[3] += [f"s_sub_u32 {s(S_CNT)}, {s(S_CNT)}, 1"]; G[5] += [f"s_cmp_eq_u32 {s(S_CNT)}, 0"]
            if i == 5:
                G = {1: ["s_waitcnt vmcnt(6) lgkmcnt(0)", "s_barrier"] if b == 1 else ["s_waitcnt lgkmcnt(0)", "BARRIER_UNLESS_LAST"]}
                for k in range(4): G[k + 2] = [rr[k]]
            o += weave(ogrp(b, i), G, pre)
        return o
    body = step(1) + step(0)
    tail = ["s_nop 4"] + cv(0, 0) + [st(0)] + cv(0, 1) + [st(1)] + cv(0, 2) + [st(2), "s_waitcnt lgkmcnt(0)"]
    def rep(b, last):
        o = []
        for x in b:
            if x == "BARRIER_UNLESS_LAST":
                if last is None: o += ["s_cbranch_scc1 L_onb", "s_barrier", "L_onb:"]
                elif last: o += ["s_cbranch_scc1 L_onb"]
                else: o += ["s_cbranch_scc1 L_onb", "s_barrier"]
            else: o.append(x)
        return o
    code = ["L_o:"] + rep(body, None) + ["s_cbranch_scc0 L_o"] + tail
    trace = (rep(body, False) + ["s_cbranch_scc0 L_o"]) * 3 + rep(body, True) + ["s_cbranch_scc0 L_o"] + tail
    return code, trace

SFL, SPA, SOUT, SDB = 68, 72, 76, 64
FLOFF = 30 << 20
def red_setup():
    L = []; A = L.append
    A(f"s_mul_i32 s50, {s(S_B)}, {16*110592}")
    if OPT["wsoff"]: A(f"s_add_u32 s50, s50, {OPT['wsoff'] << 20}")
    A(f"s_add_u32 {s(SPA)}, s18, s50"); A(f"s_addc_u32 {s(SPA+1)}, s19, 0")
    A(f"s_mov_b32 {s(SPA+2)}, {16*110592}"); A(f"s_mov_b32 {s(SPA+3)}, 0x20000")
    A(f"s_mul_i32 s50, {s(S_B)}, 110592")
    A(f"s_add_u32 {s(SOUT)}, s14, s50"); A(f"s_addc_u32 {s(SOUT+1)}, s15, 0")
    A(f"s_mov_b32 {s(SOUT+2)}, 110592"); A(f"s_mov_b32 {s(SOUT+3)}, 0x20000")
    A("v_lshrrev_b32 v100, 4, v0")
    A("v_bfe_u32 v101, v0, 3, 1")
    A("v_and_b32 v102, 7, v0")
    A("v_mul_u32_u24 v103, 110592, v100")
    A("v_lshl_add_u32 v103, v101, 9, v103")
    A("v_lshl_add_u32 v103, v102, 4, v103")
    A("v_mul_u32_u24 v104, 1152, v102")
    A("v_lshl_add_u32 v104, v100, 5, v104")
    A("v_lshl_add_u32 v104, v101, 4, v104")
    A("v_and_b32 v105, 1, v0")
    A("v_lshlrev_b32 v105, 4, v105")
    A("v_mov_b32 v106, 0x3f80")
    A("v_lshlrev_b32 v105, v105, v106")
    A("v_bfe_u32 v106, v0, 1, 3")
    A("v_lshlrev_b32 v106, v106, 1")
    for t in range(8): A(f"v_bfe_i32 {v(108+t)}, v106, {t}, 1")
    for t in range(8): A(f"v_and_b32 {v(108+t)}, {v(108+t)}, v105")
    A("v_mov_b32 v107, 0")
    return L

def red_decode():
    return ["s_mul_i32 s50, s86, 43", "s_lshr_b32 s50, s50, 9",
            "s_mul_i32 s51, s50, 12", "s_sub_u32 s51, s86, s51",
            "s_lshr_b32 s52, s51, 1",
            "s_and_b32 s51, s51, 1",
            "s_lshl_b32 s92, s50, 7",
            "s_lshl_b32 s50, s50, 1", "s_add_u32 s50, s50, s51", "s_mul_i32 s91, s50, 6144",
            "s_mul_i32 s51, s51, 6", "s_add_u32 s51, s51, s52", f"s_mul_i32 s51, s51, {8*1152}", "s_add_u32 s92, s92, s51",
            "s_and_b32 s53, s52, 1", "s_mul_i32 s53, s53, 384", "s_lshl_b32 s52, s52, 9", "s_sub_u32 s52, s52, s53",
            "s_add_u32 s91, s91, s52"]

def red_unit():
    L = []; A = L.append
    for qd in range(4):
        for h in range(2):
            for a in range(2):
                A(f"buffer_load_dwordx4 {v(16+4*(4*qd+2*h+a),4)}, v103, {s(SPA,4)}, s91 offen offset:{h*3072+a*256} sc1")
        if qd < 3: A("s_add_u32 s91, s91, 442368")
    n = 0
    for qd in range(4):
        for h in range(2):
            for a in range(2):
                if a == 0: A(f"s_waitcnt vmcnt({14-n})")
                A(mfma(120+4*a, 108+4*h, 16+4*n, None if n < 2 else 120+4*a)); n += 1
    L += stamp("loaded")
    A("s_nop 7")
    for i in range(4): A(cvt(116+i, 120+2*i, 121+2*i))
    A(f"buffer_store_dwordx4 v[116:119], v104, {s(SOUT,4)}, s92 offen")
    return L

def X1(ins): return ["s_mov_b64 exec, 1"] + ins + ["s_mov_b64 exec, -1"]

def c_finish():
    pre = ["L_red:"] + stamp("end issue") + red_setup() + ["s_waitcnt vmcnt(0)"] + stamp("drained") + ["s_barrier",
          f"s_lshl_b32 s84, 1, {s(S_J)}", f"s_mov_b32 s82, {s(S_W)}", "s_mov_b32 s83, 1", "s_mov_b32 s88, 1"]
    own = ["L_own:", "s_cmp_eq_u32 s84, 0", "s_cbranch_scc1 L_rdone",
           "s_ff1_i32_b32 s85, s84", "s_bitset0_b32 s84, s85", "s_lshl_b32 s86, s82, 4", "s_add_u32 s86, s86, s85", "s_mov_b32 s87, s83",
           "L_unit:", "s_cmp_ge_u32 s86, 108", "s_cbranch_scc1 L_own"] + red_decode() + ["s_cmp_eq_u32 s88, 0", "s_cbranch_scc1 L_ugo"]
    gate = ["s_barrier", "ds_read_b32 v2, v107", "s_mov_b32 s88, 0", "s_waitcnt lgkmcnt(0)", "v_readfirstlane_b32 s50, v2"] + stamp("F2") + \
           ["s_cmp_eq_u32 s50, 0", "s_cbranch_scc1 L_rdone", "L_ugo:"]
    unit = red_unit() + ["s_add_u32 s86, s86, 16", "s_sub_u32 s87, s87, 1", "s_cmp_gt_u32 s87, 0", "s_cbranch_scc1 L_unit", "s_branch L_own"]
    done = ["L_rdone:"]
    if OPT["stamps"]:
        done += ["s_waitcnt vmcnt(0) lgkmcnt(0)"] + stamp("end") + ["s_waitcnt lgkmcnt(0)", "v_writelane_b32 v1, s96, m0",
              f"s_cmp_ge_u32 {s(S_W)}, 4", "s_cbranch_scc1 L_rend",
              "s_add_u32 s56, s18, 0x2000000", "s_addc_u32 s57, s19, 0", "s_mov_b32 s58, 0x40000", "s_mov_b32 s59, 0x20000",
              "s_lshl_b32 s50, s2, 2", f"s_add_u32 s50, s50, {s(S_W)}", "s_lshl_b32 s50, s50, 8", "v_lshlrev_b32 v2, 2, v0",
              "buffer_store_dword v1, v2, s[56:59], s50 offen"]
        if OPT["stamps"] == 4:
            done += [f"s_cmp_lg_u32 {s(S_W)}, 0", "s_cbranch_scc1 L_rend",
                     "s_mov_b32 s56, s16", "s_mov_b32 s57, s17", "s_mov_b32 s58, 64",
                     "v_readfirstlane_b32 s50, v1", "s_not_b32 s50, s50", "v_writelane_b32 v1, s50, 0",
                     "v_mul_u32_u24 v3, 43, v0", "v_lshrrev_b32 v3, 7, v3", "v_add3_u32 v3, v3, v0, 1", "v_lshlrev_b32 v3, 2, v3",
                     "buffer_atomic_umax v1, v3, s[56:59], 0 offen sc1"]
        done += ["L_rend:"]
    done += ["s_endpgm"]
    hsl = f"buffer_load_dword v20, v107, {s(SDB,4)}, s93 offen sc1  ; poll"
    p0 = ["L_poll:", "s_waitcnt vmcnt(0)", "s_barrier"] + X1([f"buffer_store_dword v21, v22, {s(SFL,4)}, 0 offen sc1  ; publish"]) + [f"s_mov_b32 s89, {OPT['lim']}", "s_mov_b32 s90, 0",
          "L_hs:", "v_readfirstlane_b32 s50, v20", "s_cmp_eq_u32 s50, 16", "s_cbranch_scc1 L_pf"]
    p1 = ["L_hsl:", hsl, "s_waitcnt vmcnt(0)", "s_sub_u32 s89, s89, 1", "s_cmp_gt_u32 s89, 0", "s_cbranch_scc1 L_hs", "s_branch L_to"]
    p2 = ["L_pf:", f"buffer_load_dword v23, v24, {s(SFL,4)}, 0 offen sc1  ; poll", "s_sub_u32 s89, s89, 1", "s_waitcnt vmcnt(0)",
          "v_cmp_ne_u32 vcc, 1, v23", "s_cbranch_vccz L_go"]
    p3 = ["s_cmp_gt_u32 s89, 0", "s_cbranch_scc1 L_pf",
          "L_to:", "s_cmp_eq_u32 s90, 1", "s_cbranch_scc1 L_quit"] + X1([f"buffer_store_dword v21, v22, {s(SFL,4)}, 0 offen offset:4 sc1"]) + \
         ["s_mov_b32 s90, 1", "s_mov_b32 s89, 2", "s_waitcnt vmcnt(0)", "s_branch L_hsl",
          "L_quit:", "ds_write_b32 v107, v107", "s_waitcnt lgkmcnt(0)", "s_barrier", "s_endpgm"]
    p4 = ["L_go:", "ds_write_b32 v107, v21", "s_waitcnt lgkmcnt(0)", "s_barrier",
          f"buffer_load_dword v23, v24, {s(SFL,4)}, 0 offen offset:4 sc1", "s_mov_b32 s82, 0", "s_mov_b32 s83, 7", "s_mov_b32 s88, 0",
          "s_waitcnt vmcnt(0)", "v_cmp_eq_u32 vcc, 1, v23", "s_nop 1", "s_and_b32 s84, vcc_lo, 0xffff", f"s_bitset0_b32 s84, {s(S_J)}", "s_branch L_own"]
    code = pre + own + gate + unit + done + p0 + p1 + p2 + p3 + p4
    tr_w = pre + own + gate + unit + own[:3] + done
    tr_p = p0 + p2 + p4 + own + unit + own[:3] + done
    return code, tr_w, tr_p

def dma4(voffs, srd, soff, nt=False):
    if srd in OPT["nodma"]: return []
    nt = nt or {SX: "x", SWQ: "q", SWO: "o"}.get(srd, "-") in str(OPT["ntd"])
    return [f"buffer_load_dwordx4 {v(voffs[i])}, {s(srd,4)}, {s(soff)} offen offset:{1024*i}{' nt' if nt else ''} lds" for i in range(4)]

def NTT(): return ' nt' if OPT['ntt'] else ''
def bar(n): return ["s_barrier"] * n

def l_wq():
    L = []; A = L.append
    A(f"s_sub_u32 s60, {s(S_W)}, 4")
    A("v_lshrrev_b32 v10, 5, v0")
    A("v_bfe_u32 v11, v0, 2, 2")
    A("v_and_b32 v12, 0x13, v0")
    A("v_lshlrev_b32 v12, 4, v12")
    for i in range(4):
        A(f"v_add_u32 v13, {2*i}, v10")
        A("v_and_b32 v14, 3, v13")
        A("v_xor_b32 v14, v14, v11")
        A("v_lshl_add_u32 v14, v14, 6, v12")
        A("v_lshl_add_u32 v14, v13, 13, v14")
        A(f"v_subrev_u32 {v(2+i)}, {1024*i}, v14")
    A("v_lshrrev_b32 v10, 3, v0")
    A("v_mul_u32_u24 v10, 1152, v10")
    A("v_bfe_u32 v11, v0, 1, 2")
    A("v_lshrrev_b32 v12, 4, v0")
    A("v_xor_b32 v11, v11, v12")
    A("v_lshl_add_u32 v10, v11, 5, v10")
    A("v_and_b32 v11, 1, v0")
    A("v_lshl_add_u32 v10, v11, 4, v10")
    for i in range(4): A(f"v_add_u32 {v(6+i)}, {i*(8*1152-1024)}, v10")
    A(f"s_mul_i32 s56, s60, {GOFF[2]}")
    A(f"s_add_u32 s56, s56, {QST}")
    A("s_mov_b32 s61, s56")
    A(f"s_add_u32 s57, s56, {4*WQSLOT}")
    A(f"s_lshl_b32 s62, s60, {4+13}")
    def issue():
        return (["s_mov_b32 m0, s61", f"s_add_u32 s63, s62, {8*8192}"] + dma4([2,3,4,5], SWQ, 62) +
                [f"s_add_u32 m0, s61, {GOFF[1]}", f"s_add_u32 s61, s61, {WQSLOT}"] + dma4([2,3,4,5], SWQ, 63) +
                [f"s_add_u32 s62, s62, {32*8192}", "s_cmp_eq_u32 s61, s57", "s_cselect_b32 s61, s56, s61"])
    pro = L + [f"s_mov_b32 {s(S_CNT)}, 18"]
    body = issue() + [f"s_sub_u32 {s(S_CNT)}, {s(S_CNT)}, 1", f"s_cmp_gt_u32 {s(S_CNT)}, 15"]
    wb = ["s_waitcnt vmcnt(16)", "s_barrier", f"s_cmp_gt_u32 {s(S_CNT)}, 0"]
    tch = []
    if OPT["coop"] == 2:
        tch = [f"s_cmp_lg_u32 {s(S_CNT)}, 15", "s_cbranch_scc1 L_wq1",
               "s_lshr_b32 s58, s2, 5", "s_lshl_b32 s58, s58, 1", "s_add_u32 s58, s58, s60", "s_lshl_b32 s58, s58, 17", f"s_add_u32 s58, s58, {96*8192}",
               "v_lshrrev_b32 v20, 2, v0", "v_and_b32 v21, 3, v0", "v_lshlrev_b32 v20, 13, v20", "v_lshl_add_u32 v20, v21, 7, v20",
               f"buffer_load_dword v32, v20, {s(SWQ,4)}, s58 offen{NTT()}", f"s_add_u32 s58, s58, {256*8192}",
               f"buffer_load_dword v33, v20, {s(SWQ,4)}, s58 offen{NTT()}", "L_wq1:"]
    mid = ["s_waitcnt vmcnt(8)", "s_barrier", "s_waitcnt vmcnt(0)", "s_barrier", "s_barrier"]
    mid += [f"s_lshl_b32 s56, s60, 14", f"s_mul_i32 s62, s60, {128*1152}", f"s_movk_i32 s58, 0"]
    def wissue(slot_expr):
        o = slot_expr
        for q in range(4):
            o += [f"s_add_u32 m0, s61, {q*4096}", f"s_add_u32 s63, s62, {q*32*1152}"] + dma4([6,7,8,9], SWO, 63)
        o += ["s_add_u32 s62, s62, 128"]
        return o
    def slot_const(k): return [f"s_add_u32 s61, s56, {WOS[k]}"]
    pf = []
    if OPT["coop"] and "o" not in str(OPT["ts"]):
        pf = ["s_lshr_b32 s57, s2, 5", "s_lshl_b32 s57, s57, 1", "s_add_u32 s57, s57, s60", "s_lshl_b32 s57, s57, 13", "v_lshlrev_b32 v20, 7, v0"]
        pfu = [[f"buffer_load_dword {v(32+u)}, v20, {s(SWO,4)}, s57 offen{NTT()}", f"s_add_u32 s57, s57, {1024*128}"] for u in range(3)]
    wd = [int(x) for x in str(OPT["wod"]).split(".")]
    wp = [int(x) for x in str(OPT["wop"]).split(".")]
    assert wd[1] >= 12 and wd[2] >= 14 and wd == sorted(wd) and wd[1] <= 16 and wd[2] <= 17 and max(wp) < wd[0]
    att = list(pf)
    assert wd[0] <= 15 and wd[2] == 17
    for q in range(1, 17):
        if q == 16: att += [f"s_waitcnt vmcnt({16 if wd[1] < 16 else 0})"]
        att += ["s_barrier"]
        for u in range(3):
            if pf and wp[u] == q: att += pfu[u]
        for k in range(3):
            if wd[k] == q: att += wissue(slot_const(k))
    att += ["s_barrier"] + (wissue(slot_const(2)) if wd[2] == 17 else [])
    att += [f"s_mov_b32 {s(S_CNT)}, 6", f"s_mov_b32 s58, {WOS[0]}"]
    wbody = ["s_waitcnt vmcnt(16)", "s_barrier"] + wissue(["s_add_u32 s61, s56, s58"] + nextslot("s58")) + [f"s_sub_u32 {s(S_CNT)}, {s(S_CNT)}, 1", f"s_cmp_gt_u32 {s(S_CNT)}, 0"]
    fin = ["s_waitcnt vmcnt(16)", "s_barrier", "s_waitcnt vmcnt(0)", "s_barrier", "s_branch L_red"]
    code = pro + ["L_wq:"] + body + ["s_cbranch_scc1 L_wq"] + tch + wb + ["s_cbranch_scc1 L_wq"] + mid + att + ["L_wo:"] + wbody + ["s_cbranch_scc1 L_wo"] + fin
    trace = pro + (body + ["s_cbranch_scc1 L_wq"]) * 2 + (body + ["s_cbranch_scc1 L_wq"] + wb + ["s_cbranch_scc1 L_wq"]) * 16 + mid + att + (wbody + ["s_cbranch_scc1 L_wo"]) * 6 + fin
    return code, trace

def kv_voffs(kind, base):
    L = []; A = L.append
    A("v_lshrrev_b32 v10, 4, v0")
    A("v_and_b32 v11, 15, v0")
    A("v_lshlrev_b32 v13, 8, v10")
    for i in range(4 if kind == "K" else 2):
        A(f"v_add_u32 v12, {4*i}, v10")
        if kind == "V": A("v_lshlrev_b32 v12, 1, v12")
        A("v_xor_b32 v12, v12, v11")
        A(f"v_lshl_add_u32 {v(base+i)}, v12, 4, v13")
    return L

def kv_tile(kind, vo, st):
    srd = SK if kind == "K" else SV
    regs = [vo, vo+1, vo+2, vo+3] if kind == "K" else [vo, vo+1, vo, vo+1]
    o = [f"s_and_b32 s56, {s(st)}, 7", "s_lshl_b32 s56, s56, 14"]
    if kind == "V": o += ["s_add_u32 s56, s56, 8192"]
    o += [f"s_add_u32 s57, {s(st)}, {s(S_ROT)}", "s_and_b32 s57, s57, 15", "s_mov_b32 m0, s56", "s_lshl_b32 s57, s57, 13"]
    o += dma4(regs, srd, 57, nt=True)
    o += ["s_add_u32 m0, s56, 4096", "s_add_u32 s57, s57, 4096"] + dma4(regs, srd, 57, nt=True)
    o += [f"s_add_u32 {s(st)}, {s(st)}, 1"]
    return o

def l_x():
    L = []; A = L.append
    A("v_lshrrev_b32 v10, 3, v0")
    A("v_mul_u32_u24 v10, 1152, v10")
    A("v_and_b32 v11, 7, v0")
    A("v_lshrrev_b32 v12, 4, v0")
    for i in range(4):
        A(f"v_xor_b32 v13, {4*(i&1)}, v12")
        A("v_xor_b32 v13, v13, v11")
        A("v_lshl_add_u32 v13, v13, 4, v10")
        A(f"v_add_u32 {v(2+i)}, {i*(8*1152-1024)}, v13")
    A(f"s_mov_b32 s61, {XST}")
    A("s_mov_b32 s62, 0")
    def issue():
        o = []
        for q in range(3):
            o += [f"s_add_u32 m0, s61, {q*4096}", f"s_add_u32 s63, s62, {q*32*1152}"] + dma4([2,3,4,5], SX, 63)
        o += ["s_add_u32 s62, s62, 128", f"s_add_u32 s61, s61, {XSLOT}", f"s_cmp_eq_u32 s61, {XST+3*XSLOT}", f"s_cselect_b32 s61, {XST}, s61"]
        return o
    pro = L + [f"s_mov_b32 {s(S_CNT)}, 9"]
    body = issue() + [f"s_sub_u32 {s(S_CNT)}, {s(S_CNT)}, 1", f"s_cmp_gt_u32 {s(S_CNT)}, 6"]
    b0 = [f"s_cmp_lt_u32 {s(S_CNT)}, 6"]
    b0b = ["s_waitcnt vmcnt(24)", "s_barrier"]
    if OPT["coop"] == 2:
        tx = ["s_lshr_b32 s56, s2, 3", "s_and_b32 s56, s56, 3", "s_lshl_b32 s56, s56, 6", "v_add_u32 v21, s56, v0"]
        for u in range(3):
            tx += [f"v_add_u32 v22, {288+256*u}, v21", "v_mul_u32_u24 v23, 683, v22", "v_lshrrev_b32 v23, 16, v23",
                   "v_mul_u32_u24 v24, 96, v23", "v_sub_u32 v24, v22, v24", "v_mul_u32_u24 v24, 1152, v24",
                   f"v_lshl_add_u32 {v(26+u)}, v23, 7, v24", f"buffer_load_dword {v(40+u)}, {v(26+u)}, {s(SX,4)}, 0 offen{NTT()}"]
        b0b = tx + ["s_waitcnt vmcnt(27)", "s_barrier"]
    wb = ["s_barrier", "s_waitcnt vmcnt(12)", "s_barrier", f"s_cmp_gt_u32 {s(S_CNT)}, 0"]
    mid = ["s_barrier", "s_waitcnt vmcnt(0)", "s_barrier"] + kv_voffs("V", 6) + ["s_barrier", "s_barrier", "s_mov_b32 s60, 3"]
    W = OPT["kvw"]
    vt = kv_tile("V", 6, 60)
    va = vt * (W - 3)
    issued = W
    for q in range(1, 17):
        need = q - 1
        if need >= 3: va += [f"s_waitcnt vmcnt({8*(issued-1-need)})"]
        va += ["s_barrier"]
        if issued < 16: va += vt; issued += 1
    va = compress(va, "L_v", 61)
    fin = bar(9) + ["s_branch L_red"]
    code = (pro + ["L_x:"] + body + ["s_cbranch_scc1 L_x"] + b0 + ["s_cbranch_scc1 L_x1"] + b0b + ["L_x1:"] + wb + ["s_cbranch_scc1 L_x"] + mid + va[0] + fin)
    trace = pro + body * 2 + body + b0 + b0b + wb + (body + b0 + wb) * 6 + mid + va[1] + fin
    return code, trace

def compress(seq, label, cnt):
    idx = [i for i, x in enumerate(seq) if x == "s_barrier"]
    segs = [seq[a+1:b+1] for a, b in zip(idx, idx[1:])]
    best = (0, 0)
    i = 0
    while i < len(segs):
        j = i
        while j + 1 < len(segs) and segs[j+1] == segs[i]: j += 1
        if (j - i + 1) * len(segs[i]) > best[0] * (len(segs[best[1]]) if segs else 0) and j > i: best = (j - i + 1, i)
        i = j + 1
    n, i = best
    if n < 2: return seq, seq
    a = idx[i] + 1; b = idx[i + n] + 1
    body = segs[i] + [f"s_sub_u32 s{cnt}, s{cnt}, 1", f"s_cmp_gt_u32 s{cnt}, 0"]
    code = seq[:a] + [f"s_mov_b32 s{cnt}, {n}", label + ":"] + body + [f"s_cbranch_scc1 {label}"] + seq[b:]
    trace = seq[:a] + [f"s_mov_b32 s{cnt}, {n}"] + (body + [f"s_cbranch_scc1 {label}"]) * n + seq[b:]
    return code, trace

def coop_xwq():
    L = []; A = L.append
    A("s_lshr_b32 s56, s2, 3")
    A("s_lshr_b32 s57, s56, 2")
    A("s_and_b32 s56, s56, 3")
    A("v_lshrrev_b32 v20, 2, v0"); A("v_and_b32 v21, 3, v0")
    A("v_lshlrev_b32 v20, 13, v20"); A("v_lshl_add_u32 v20, v21, 7, v20")
    A("s_lshl_b32 s57, s57, 17")
    A("s_lshl_b32 s56, s56, 6"); A("v_add_u32 v21, s56, v0")
    xs = []
    for u in range(4):
        xs.append([f"v_add_u32 v22, {256*u}, v21", "v_mul_u32_u24 v23, 683, v22", "v_lshrrev_b32 v23, 16, v23",
                   "v_mul_u32_u24 v24, 96, v23", "v_sub_u32 v24, v22, v24", "v_mul_u32_u24 v24, 1152, v24",
                   f"v_lshl_add_u32 {v(26+u)}, v23, 7, v24",
                   f"buffer_load_dword {v(40+u)}, {v(26+u)}, {s(SX,4)}, 0 offen{NTT()}"])
    for u in range(5):
        A(f"buffer_load_dword {v(32+u)}, v20, {s(SWQ,4)}, s57 offen{NTT()}")
        A(f"s_add_u32 s57, s57, {128*8192}")
        if u < 4: L += xs[u]
    return L

def l_k():
    tl = []
    if OPT["tlb"]:
        tl = [f"buffer_load_dword {v(51+i)}, v50, {s(srd,4)}, 0 offen{' sc1' if srd == SWS else NTT()}" for i, srd in enumerate((SK, SV, SWO, SWS))]
    tl = ["v_mov_b32 v50, 0", "v_mov_b32 v49, 0", "v_mov_b32 v48, 0"] + tl + [f"s_lshl_b32 s50, {s(S_B)}, 11", f"s_add_u32 s50, s50, {FLOFF}",
          f"s_add_u32 {s(SFL)}, s18, s50", f"s_addc_u32 {s(SFL+1)}, s19, 0", f"s_mov_b32 {s(SFL+2)}, 2048", f"s_mov_b32 {s(SFL+3)}, 0x20000",
          f"s_mov_b32 {s(SDB)}, s16", f"s_mov_b32 {s(SDB+1)}, s17", f"s_mov_b32 {s(SDB+2)}, 256", f"s_mov_b32 {s(SDB+3)}, 0x20000",
          f"s_lshl_b32 s93, {s(S_B)}, 4", f"s_lshl_b32 s50, {s(S_J)}, 7", "v_mov_b32 v46, s50", "v_mov_b32 v47, 1"] + \
         X1([f"buffer_store_dwordx2 v[48:49], v46, {s(SFL,4)}, 0 offen sc1"])
    hs = ["s_waitcnt vmcnt(0)"] + X1([f"buffer_atomic_add v47, v50, {s(SDB,4)}, s93 offen sc1"]) + ["v_mov_b32 v22, v46"]
    pro = (coop_xwq() if OPT["coop"] == 1 else []) + tl + kv_voffs("K", 2) + kv_voffs("V", 6) + ["s_mov_b32 s60, 0", "s_mov_b32 s61, 0"]
    ek = [int(x) for x in str(OPT["ekv"]).split(".")]
    assert len(ek) == 7 and ek == sorted(ek)
    ts = []
    if OPT["coop"] == 3:
        pro += ["s_lshr_b32 s56, s2, 3", "s_lshr_b32 s57, s56, 2", "s_and_b32 s56, s56, 3",
                "v_lshrrev_b32 v20, 2, v0", "v_and_b32 v21, 3, v0", "v_lshlrev_b32 v20, 13, v20", "v_lshl_add_u32 v20, v21, 7, v20",
                "s_lshl_b32 s64, s57, 17", f"s_add_u32 s64, s64, {96*8192}", "s_lshl_b32 s65, s57, 13", "v_lshlrev_b32 v25, 7, v0",
                "s_lshl_b32 s56, s56, 6", "v_add_u32 v21, s56, v0"]
        for u in range(3):
            pro += [f"v_add_u32 v22, {288+256*u}, v21", "v_mul_u32_u24 v23, 683, v22", "v_lshrrev_b32 v23, 16, v23",
                    "v_mul_u32_u24 v24, 96, v23", "v_sub_u32 v24, v22, v24", "v_mul_u32_u24 v24, 1152, v24", f"v_lshl_add_u32 {v(26+u)}, v23, 7, v24"]
        cnt = dict(q=0, x=0, o=0)
        for n, tok in enumerate(str(OPT["ts"]).split(".")):
            kind, bi = tok[0], int(tok[1:]); u = cnt[kind]; cnt[kind] += 1
            if kind == "q": ins = [f"buffer_load_dword {v(32+n)}, v20, {s(SWQ,4)}, s64 offen{NTT()}", f"s_add_u32 s64, s64, {128*8192}"]
            if kind == "x": ins = [f"buffer_load_dword {v(32+n)}, {v(26+u)}, {s(SX,4)}, 0 offen{NTT()}"]
            if kind == "o": ins = [f"buffer_load_dword {v(32+n)}, v25, {s(SWO,4)}, s65 offen", f"s_add_u32 s65, s65, {512*128}"]
            ts.append((bi, ins))
        assert cnt["q"] <= 4 and cnt["x"] <= 3 and cnt["o"] <= 5
    early = []
    clr = {}
    if OPT["clr"]:
        c0, per = [int(x) for x in str(OPT["clr"]).split(".")]
        pro += ["v_lshlrev_b32 v60, 4, v0", "s_mov_b32 s66, 0"] + [f"v_mov_b32 {v(56+i)}, -1" for i in range(4)]
        n = 0; bi = c0
        while n < 108:
            k = min(per, 108 - n)
            clr[bi] = ["s_waitcnt vmcnt(40)"] + [f"buffer_store_dwordx4 v[56:59], v60, {s(SWS,4)}, s66 offen offset:{(i&3)*1024} sc1" + ("\n    s_add_u32 s66, s66, 4096" if (i & 3) == 3 else "") for i in range(n, n + k)]
            n += k; bi += 1
        assert bi <= 15
    for bi in range(-1, 18):
        if bi >= 0: early += ["s_barrier"]
        early += clr.get(bi, [])
        if bi == 8: early += hs
        for b2, ins in ts:
            if b2 == bi: early += ins
        for n, e in enumerate(ek):
            if e == bi: early += (["s_waitcnt vmcnt(40)"] if n >= 5 else []) + kv_tile("V" if n & 1 else "K", 6 if n & 1 else 2, 61 if n & 1 else 60)
    W = OPT["kvw"]
    kb = kv_tile("K", 2, 60)
    def pos(kind, t): return (2 * t + (kind == "V")) if t < 3 or (t == 3 and kind == "K") else 3 + t
    seq = ["s_waitcnt vmcnt(48)", "s_barrier"]
    issued = 4
    def issue():
        nonlocal issued
        o = []
        if (3 + issued + 1 - lastw - 1) * 8 > 63: o = ["s_waitcnt vmcnt(48)"]
        issued += 1
        return o + kb
    lastw = 0
    for _ in range(W - 3): seq += issue()
    for q in range(1, 17):
        need = max(pos("K", min(q, 15)), pos("V", q - 1) if q - 1 < 3 else 0)
        n = min(8 * (3 + issued - 1 - need), 56)
        seq += [f"s_waitcnt vmcnt({n})", "s_barrier"]
        lastw = 3 + issued - 1 - n // 8
        if issued < 16: seq += issue()
    kc, kt = compress(seq, "L_k", 62)
    fin = bar(1) + ["v_mov_b32 v21, 1", "v_and_b32 v24, 15, v0", "v_lshlrev_b32 v24, 7, v24",
                    f"buffer_load_dword v20, v50, {s(SDB,4)}, s93 offen sc1"] + bar(1) + red_setup() + bar(7) + ["s_branch L_poll"]
    code = pro + early + kc + fin
    trace = pro + early + kt + fin
    return code, trace

def build():
    pro = prologue()
    cs = c_setup(); qc, qt = c_qproj(); qv = c_qcvt(); ac, at = c_attn(); on = c_epi(); oc, ot = c_oproj(); fi, fw, fp = c_finish()
    wqc, wqt = l_wq(); xc, xt = l_x(); kc, kt = l_k()
    disp = ["L_loaders:", f"s_cmp_eq_u32 {s(S_W)}, 6", "s_cbranch_scc1 L_ldx", f"s_cmp_eq_u32 {s(S_W)}, 7", "s_cbranch_scc1 L_ldk"]
    slc, slt = c_slow()
    code = pro + cs + qc + qv + ac + on + oc + fi + disp + wqc + ["L_ldx:"] + xc + ["L_ldk:"] + kc + slc + ["L_end:", "s_endpgm"]
    if OPT["check"]:
        tot = 0; nb = set()
        for nm, tr in (("compute", pro + cs + qt + qv + at + on + ot + fw), ("wq", pro + wqt + fw), ("x", pro + xt + fw), ("k", pro + kt + fp)):
            e, b = chk.check(tr, nm)
            tot += e
            if nm != "red": nb.add(b)
        assert len(nb) == 1, f"barrier mismatch {nb}"
    names = [x.split("; stamp ")[1] for x in pro + cs + qt + qv + at + on + ot + fw if "; stamp " in x]
    assert len(names) <= 64
    def fmt(L): return "\n".join(x if x.endswith(":") else "    " + x for x in L)
    def desc(name, vg, y):
        return f""".amdhsa_kernel {name}
  .amdhsa_next_free_vgpr {vg}
  .amdhsa_next_free_sgpr 102
  .amdhsa_accum_offset {vg}
  .amdhsa_group_segment_fixed_size 0
  .amdhsa_kernarg_size 64
  .amdhsa_user_sgpr_count 2
  .amdhsa_user_sgpr_kernarg_segment_ptr 1
  .amdhsa_system_sgpr_workgroup_id_x 1
""" + ("  .amdhsa_system_sgpr_workgroup_id_y 1\n" if y else "") + ".end_amdhsa_kernel\n"
    return f"""; Fused GQA block: Q-proj + attention + O-proj partials per (batch, kv head) workgroup, in-launch reduction.
; @launch grid=(256,1,1) block=(512,1,1) lds=163840
.amdgcn_target "amdgcn-amd-amdhsa--gfx950"
.text
.globl {KMAIN}
.p2align 8
.type {KMAIN},@function
{KMAIN}:
{fmt(code)}
.section .rodata,"a"
.p2align 6
{desc(KMAIN, 256, False)}"""

if __name__ == "__main__":
    out = sys.argv[1]
    for a in sys.argv[2:]:
        k, val = a.split("=")
        OPT[k] = int(val) if val.lstrip("-").isdigit() else val
    OPT["stf"] = OPT["stf"].replace("_", " ")
    if OPT["nodma"]: OPT["nodma"] = [dict(x=SX, k=SK, v=SV, q=SWQ, o=SWO)[c] for c in OPT["nodma"]]
    open(out, "w").write(build())
    import subprocess
    r = subprocess.run(["clang", "-x", "assembler", "-target", "amdgcn-amd-amdhsa", "-mcpu=gfx950", "-c", out, "-o", "gen_check.o"], capture_output=True, text=True)
    if r.returncode: print("ASM ERROR\n" + "\n".join(r.stderr.split("\n")[:12]))
    else:
        r = subprocess.run(["llvm-readelf", "-S", "gen_check.o"], capture_output=True, text=True)
        r2 = subprocess.run(["python3", "cdna_unwritten_srd_check.py", out], capture_output=True, text=True)
        print("srd check rc", r2.returncode, (r2.stdout + r2.stderr).strip()[:1500])
        print(out, "text bytes:", [int(l.split()[6], 16) for l in r.stdout.split("\n") if " .text" in l])
```
